```python
import torch

def _softmax(x, axis=-1):
    return torch.softmax(x, dim=axis)
def _gelu(x):
    return torch.nn.functional.gelu(x, approximate="tanh")
def _silu(x):
    return torch.nn.functional.silu(x)
def _sigmoid(x):
    return torch.sigmoid(x)
def _layernorm(x, axis=-1, eps=1e-5):
    m = x.mean(dim=axis, keepdim=True)
    v = x.var(dim=axis, keepdim=True, unbiased=False)
    return (x - m) / torch.sqrt(v + eps)
def _scatter_add(tgt, idx, src, axis=0):
    return tgt.clone().index_add_(axis, idx, src)
def _segment_sum(src, seg, n):
    out = torch.zeros((n,) + src.shape[1:], dtype=src.dtype)
    return out.index_add_(0, seg, src)
def _pad(x, pw):
    flat = tuple(v for pair in reversed(pw) for v in pair)
    return torch.nn.functional.pad(x, flat)

kernel_name = 'gated_mix__compressed_kv_cla__dense_activation_relu__prompt'

def setup_inputs():

    _w = (lambda a: (lambda t: t.to(torch.bfloat16) if t.is_floating_point() else t)(torch.as_tensor(a)))
    def _A_setup():
        B, H, Sq, Sk, D, M = 1, 16, 2048, 2048, 256, 448
        Dc = 4 * D
        return {
            "x": _w((lambda *s: torch.randn(*s, dtype=torch.bfloat16) * 0.05)(B, Sq, M)),
            "c_kv": _w((lambda *s: torch.randn(*s, dtype=torch.bfloat16) * 0.8)(B, Sk, Dc)),
            "w_q": _w((lambda *s: torch.randn(*s, dtype=torch.bfloat16) * 6.4)(M, H, D) * (M ** -0.5)),
            "w_uk": _w((lambda *s: torch.randn(*s, dtype=torch.bfloat16) * 6.4)(Dc, H, D) * (Dc ** -0.5)),
            "w_uv": _w((lambda *s: torch.randn(*s, dtype=torch.bfloat16) * 0.8)(Dc, H, D) * (Dc ** -0.5)),
            "w_o": _w((lambda *s: torch.randn(*s, dtype=torch.bfloat16) * 0.8)(H, D, M) * ((H * D) ** -0.5)),
        }
    _A_in = _A_setup()

    def _B_setup():
        B, S, D, Dff = 1, 2048, 448, 1792
        return {
            "x": _w((lambda *s: torch.randn(*s, dtype=torch.bfloat16) * 0.05)(B, S, D)),
            "w1": _w((lambda *s: torch.randn(*s, dtype=torch.bfloat16) * 0.05)(D, Dff)),
            "w2": _w((lambda *s: torch.randn(*s, dtype=torch.bfloat16) * 0.05)(Dff, D)),
        }
    _B_in = _B_setup()

    return {
        "A_x": _A_in["x"],
        "A_c_kv": _A_in["c_kv"],
        "A_w_q": _A_in["w_q"],
        "A_w_uk": _A_in["w_uk"],
        "A_w_uv": _A_in["w_uv"],
        "A_w_o": _A_in["w_o"],
        "B_x": _B_in["x"],
        "B_w1": _B_in["w1"],
        "B_w2": _B_in["w2"],
        "gate_w": _w((lambda *s: torch.randn(*s, dtype=torch.bfloat16) * 0.05)(448) * 16.0),
    }

def reference(A_x, A_c_kv, A_w_q, A_w_uk, A_w_uv, A_w_o, B_x, B_w1, B_w2, gate_w):
    def _A_ref(x, c_kv, w_q, w_uk, w_uv, w_o):
        B, Sq, M = x.shape[0], x.shape[1], x.shape[2]
        Sk = c_kv.shape[1]
        H, D = w_q.shape[1], w_q.shape[2]
        q = torch.einsum("bqm,mhd->bhqd", x, w_q)
        k = torch.einsum("bkc,chd->bhkd", c_kv, w_uk)
        v = torch.einsum("bkc,chd->bhkd", c_kv, w_uv)
        scores = torch.einsum("bhqd,bhkd->bhqk", q, k) * (D ** -0.5)
        off = Sk - Sq
        qi = torch.arange(Sq)[:, None]
        kj = torch.arange(Sk)[None, :]
        cmask = kj <= (qi + off)
        scores = torch.where(cmask[None, None], scores, -1e9)
        p = _softmax(scores, axis=-1)
        ctx = torch.einsum("bhqk,bhkd->bhqd", p, v)
        return torch.einsum("bhqd,hdm->bqm", ctx, w_o)

    def _B_ref(x, w1, w2):
        h = torch.einsum("bsd,df->bsf", x, w1)
        zero = torch.zeros_like(h)
        h = torch.maximum(h, zero)
        return torch.einsum("bsf,fd->bsd", h, w2)

    x = A_x
    g = _sigmoid((x * gate_w).sum(-1, keepdims=True))
    a = _A_ref(x, A_c_kv, A_w_q, A_w_uk, A_w_uv, A_w_o)
    b = _B_ref(x, B_w1, B_w2)
    return g * a + (1 - g) * b
```

```python
class Asm:
    def __init__(self):
        self.l = []
    def __call__(self, s=""):
        for x in s.split("\n"):
            x = x.strip()
            if x: self.l.append(x)
    def label(self, n): self.l.append(n + ":")
    def c(self, s): self.l.append("; " + s)
    def ext(self, lst):
        for x in lst: self(x)
    def text(self): return "\n".join(self.l) + "\n"

def vr(b, n=1):
    return f"v{b}" if n == 1 else f"v[{b}:{b+n-1}]"
def ar(b, n=1):
    return f"a{b}" if n == 1 else f"a[{b}:{b+n-1}]"
def sr(b, n=1):
    return f"s{b}" if n == 1 else f"s[{b}:{b+n-1}]"

def interleave(backbone, fillers):
    out = []
    out += fillers.get(-1, [])
    for i, b in enumerate(backbone):
        out.append(b)
        out += fillers.get(i, [])
    return out

def kernel_header(name):
    return f""".globl {name}
.p2align 8
.type {name},@function
{name}:"""

def kernel_desc(name, vgpr, accum, sgpr=102, lds=0):
    return f""".section .rodata,"a"
.p2align 6
.amdhsa_kernel {name}
  .amdhsa_next_free_vgpr {vgpr}
  .amdhsa_next_free_sgpr {sgpr}
  .amdhsa_accum_offset {accum}
  .amdhsa_group_segment_fixed_size 0
  .amdhsa_kernarg_size 104
  .amdhsa_user_sgpr_count 2
  .amdhsa_user_sgpr_kernarg_segment_ptr 1
  .amdhsa_system_sgpr_workgroup_id_x 1
  .amdhsa_float_denorm_mode_32 3
.end_amdhsa_kernel
.text"""

class Tracker:
    def __init__(self, name, maxc):
        self.name = name; self.maxc = maxc; self.ops = []
    def issue(self, tag, n=1):
        self.ops += [tag] * n
    def count(self, tag):
        idx = [i for i, t in enumerate(self.ops) if t == tag]
        if not idx: return None
        return len(self.ops) - 1 - idx[-1]
    def wait(self, tag):
        n = self.count(tag)
        assert n is not None, ("no such tag", tag)
        return f"s_waitcnt {self.name}({min(n, self.maxc)})"
    def reset(self): self.ops = []

def spread(fill, start, end, instrs):
    n = len(instrs); g = end - start
    for i, ins in enumerate(instrs):
        pos = start + (i * g) // n
        fill.setdefault(pos, []).append(ins)

def VM(tag, s): return ("vm", tag, s)
def LDS(tag, s): return ("lds", tag, s)
def WVM(tag): return ("wvm", tag)
def WLDS(tag): return ("wlds", tag)

class TAsm(Asm):
    def __init__(self):
        super().__init__()
        self.vm = Tracker("vmcnt", 63); self.lds = Tracker("lgkmcnt", 15)
    def put(self, x):
        if isinstance(x, str): self(x)
        elif x[0] == "vm": self.vm.issue(x[1]); self(x[2])
        elif x[0] == "lds": self.lds.issue(x[1]); self(x[2])
        elif x[0] == "wvm": self(self.vm.wait(x[1]))
        elif x[0] == "wlds": self(self.lds.wait(x[1]))
        else: raise ValueError(x)
    def ext(self, lst):
        for x in lst: self.put(x)
```

```python
from asmlib import *

WS_K = 0
WS_V = 16 << 20
WS_Q = 32 << 20
WS_H = 48 << 20
WS_G = 56 << 20
WS_F = 57 << 20
WS_OP = 64 << 20
WS_ML = 80 << 20
WS_P = 96 << 20
QSCALE = 1.4426950408889634 / 16.0
import struct
def f2u(x): return struct.unpack("<I", struct.pack("<f", x))[0]

def gen_k1(name="k1_kernel", opt=None):
    opt = opt or {}
    stamp = opt.get("stamp", False)
    dma_stride = opt.get("dma_stride", 2)
    store_flags = opt.get("store_flags", "")
    a = TAsm()
    a(kernel_header(name))
    a("s_cmp_ge_u32 s2, 256")
    a(f"s_cbranch_scc1 {name}_done")
    if stamp:
        a("s_memtime s[60:61]")
        a("s_memrealtime s[62:63]")
    a("s_load_dwordx4 s[36:39], s[0:1], 0")
    a("s_load_dwordx4 s[44:47], s[0:1], 24")
    a("s_load_dwordx2 s[42:43], s[0:1], 96")
    a("s_load_dwordx2 s[48:49], s[0:1], 16")
    a("s_load_dwordx2 s[74:75], s[0:1], 56")
    a("s_load_dwordx2 s[76:77], s[0:1], 72")
    a("s_and_b32 s50, s2, 7")
    a("s_lshr_b32 s51, s2, 3")
    a("s_lshr_b32 s52, s51, 3")
    a("s_lshl_b32 s53, s50, 2")
    a("s_add_u32 s52, s52, s53")
    a("s_lshr_b32 s53, s52, 1")
    a("s_and_b32 s54, s52, 1")
    a("s_and_b32 s55, s51, 7")
    a("s_lshr_b32 s78, s51, 4")
    a("s_lshl_b32 s79, s50, 1")
    a("s_add_u32 s78, s78, s79")
    a("s_and_b32 s79, s51, 15")
    a("v_lshrrev_b32 v5, 6, v0")
    a("v_and_b32 v6, 63, v0")
    a("s_nop 0")
    a("v_readfirstlane_b32 s56, v5")
    a("s_nop 3")
    a("s_lshr_b32 s57, s56, 1")
    a("s_and_b32 s58, s56, 1")
    a("s_lshl_b32 s80, s79, 2")
    a("s_add_u32 s80, s80, s56")
    a("v_lshrrev_b32 v7, 3, v6")
    a("v_lshlrev_b32 v24, 11, v7")
    a("v_and_b32 v25, 7, v6")
    a("v_lshrrev_b32 v26, 4, v6")
    a("v_xor_b32 v27, v25, v26")
    a("v_lshl_add_u32 v1, v27, 4, v24")
    a("v_xor_b32 v27, 4, v27")
    a("v_lshl_add_u32 v2, v27, 4, v24")
    a("v_lshrrev_b32 v7, 5, v6")
    a("v_lshlrev_b32 v24, 13, v7")
    a("v_and_b32 v25, 31, v6")
    a("v_lshlrev_b32 v26, 2, v7")
    a("v_xor_b32 v27, v25, v26")
    a("v_lshl_add_u32 v3, v27, 4, v24")
    a("v_xor_b32 v27, 8, v27")
    a("v_lshl_add_u32 v4, v27, 4, v24")
    a("v_mul_u32_u24 v240, 896, v25")
    a("v_lshl_add_u32 v240, v7, 4, v240")
    a("v_and_b32 v24, 31, v6")
    a("s_lshl_b32 s59, s57, 14")
    a("v_lshlrev_b32 v25, 7, v24")
    a("v_add_u32 v25, s59, v25")
    a("v_lshrrev_b32 v26, 1, v24")
    a("v_and_b32 v26, 7, v26")
    a("v_lshrrev_b32 v27, 5, v6")
    for s in range(4):
        a(f"v_add_u32 v28, {2*s}, v27")
        a("v_xor_b32 v28, v28, v26")
        a(f"v_lshl_add_u32 v{8+s}, v28, 4, v25")
        a(f"v_add_u32 v{12+s}, 0x10000, v{8+s}")
    a("v_lshrrev_b32 v24, 4, v6")
    a("v_and_b32 v25, 15, v6")
    a("v_lshrrev_b32 v26, 2, v25")
    a("v_and_b32 v27, 3, v25")
    a("v_lshrrev_b32 v28, 1, v24")
    a("v_lshl_add_u32 v28, v28, 3, v26")
    a("v_lshlrev_b32 v241, 8, v28")
    a("v_lshlrev_b32 v28, 9, v28")
    a("v_add_u32 v28, 0x8000, v28")
    a("v_and_b32 v29, 1, v24")
    a("v_lshlrev_b32 v29, 1, v29")
    a("v_lshrrev_b32 v30, 1, v27")
    a("v_add_u32 v29, v29, v30")
    a("v_lshl_add_u32 v241, v29, 4, v241")
    a("s_lshl_b32 s59, s58, 4")
    a("v_add_u32 v29, s59, v29")
    a("v_lshl_add_u32 v28, v29, 4, v28")
    a("v_and_b32 v30, 1, v27")
    a("v_lshl_add_u32 v28, v30, 3, v28")
    a("v_lshl_add_u32 v241, v30, 3, v241")
    for dt in range(4):
        a(f"v_xor_b32 v29, {dt}, v26")
        a(f"v_lshl_add_u32 v{16+dt}, v29, 6, v28")
        a(f"v_add_u32 v{20+dt}, 0x10000, v{16+dt}")
        a(f"v_lshl_add_u32 v{242+dt}, v29, 6, v241")
        a(f"v_add_u32 v{246+dt}, 0x10000, v{242+dt}")
    a("v_lshlrev_b32 v31, 4, v6")
    a("v_lshrrev_b32 v24, 4, v6")
    a("v_and_b32 v25, 15, v6")
    a("v_lshlrev_b32 v26, 2, v24")
    a("v_xor_b32 v25, v25, v26")
    a("v_lshlrev_b32 v25, 4, v25")
    a("v_lshl_add_u32 v250, v24, 13, v25")
    a("v_add_u32 v251, 256, v250")
    a("v_mul_u32_u24 v252, 3584, v24")
    a("v_add_u32 v252, v252, v25")
    a("v_lshrrev_b32 v253, 5, v6")
    a("v_lshlrev_b32 v253, 4, v253")
    a("v_add_u32 v253, 0x20000, v253")
    a("s_waitcnt lgkmcnt(0)")
    a("s_mov_b32 s4, s38"); a("s_mov_b32 s5, s39"); a("s_mov_b32 s6, 0x400000"); a("s_mov_b32 s7, 0x20000")
    a("s_cmp_eq_u32 s54, 0")
    a("s_cselect_b32 s8, s44, s46"); a("s_cselect_b32 s9, s45, s47")
    a("s_lshl_b32 s59, s53, 9")
    a("s_add_u32 s8, s8, s59"); a("s_addc_u32 s9, s9, 0")
    a("s_sub_u32 s10, 0x800000, s59"); a("s_mov_b32 s11, 0x20000")
    a("s_lshl_b32 s59, s54, 24")
    a("s_lshl_b32 s33, s53, 20")
    a("s_add_u32 s59, s59, s33")
    a("s_add_u32 s12, s42, s59"); a("s_addc_u32 s13, s43, 0")
    a("s_mov_b32 s14, 0x100000"); a("s_mov_b32 s15, 0x20000")
    a("s_mov_b32 s84, s36"); a("s_mov_b32 s85, s37"); a(f"s_mov_b32 s86, {2048*896}"); a("s_mov_b32 s87, 0x20000")
    a("s_lshl_b32 s59, s55, 19")
    a("s_lshl_b32 s33, s56, 17")
    a("s_add_u32 s59, s59, s33")
    for i in range(8):
        a(f"s_add_u32 s{16+i}, s59, {i*16384 - (i%4)*1024}")
        a(f"s_add_u32 s{24+i}, s33, {i*16384 - (i%4)*1024}")
    a("s_lshl_b32 s32, s56, 13")
    def dma_list(stage):
        L = []
        for reg in range(2):
            for i in range(8):
                pre = []
                if i % 4 == 0:
                    pre = [f"s_add_u32 m0, s32, {stage*65536 + reg*32768 + i*1024}"]
                if reg == 0:
                    ins = f"buffer_load_dwordx4 v{1+(i&1)}, s[4:7], s{16+i} offen offset:{(i%4)*1024} lds"
                else:
                    ins = f"buffer_load_dwordx4 v{3+(i&1)}, s[8:11], s{24+i} offen offset:{(i%4)*1024} lds"
                L.append((pre, ins))
        return L
    adv = ["v_add_u32 v1, 0x80, v1", "v_add_u32 v2, 0x80, v2", "v_add_u32 v3, 0x80000, v3", "v_add_u32 v4, 0x80000, v4"]
    for st in range(2):
        for pre, ins in dma_list(st):
            for p in pre: a(p); a("s_nop 0")
            a(ins)
        a.ext(adv)
    a("s_mul_i32 s81, s80, 28672")
    for ks in range(28):
        a(f"buffer_load_dwordx4 v[{128+4*ks}:{128+4*ks+3}], v240, s[84:87], s81 offen offset:{ks*32}")
    def frag_reads(stage, s, fs):
        b = 32 + 32*fs
        C = [f"ds_read_b128 v[{b+4*kt}:{b+4*kt+3}], v{8+4*stage+s} offset:{kt*4096}" for kt in range(4)]
        W = []
        for dt in range(4):
            for r in range(2):
                W.append(f"ds_read_b64_tr_b16 v[{b+16+4*dt+2*r}:{b+16+4*dt+2*r+1}], v{16+4*stage+dt} offset:{s*8192+r*2048}")
        return [C[0], W[0], W[1], C[1], C[2], C[3]] + W[2:]
    def mfmas(fs, which, first=False):
        b = 32 + 32*fs
        M = []
        for dt in range(4):
            for kt in range(4):
                acc = (dt*4+kt)*16
                c = f"v[{b+4*kt}:{b+4*kt+3}]"; w = f"v[{b+16+4*dt}:{b+16+4*dt+3}]"
                A, B = (w, c) if which == 0 else (c, w)
                cin = "0" if first else f"a[{acc}:{acc+15}]"
                M.append(f"v_mfma_f32_32x32x16_bf16 a[{acc}:{acc+15}], {A}, {B}, {cin}")
        return M
    a("s_waitcnt vmcnt(44)")
    a("s_barrier")
    a.ext(frag_reads(0, 0, 0))
    a("s_cmp_eq_u32 s54, 0")
    a(f"s_cbranch_scc0 {name}_vpath")
    def sub(stage, s, which, nxt, first=False):
        fs = s & 1
        fill = {}
        pre = ["s_waitcnt lgkmcnt(0)"]
        M = mfmas(fs, which, first)
        off = 0
        if s == 3 and nxt is not None:
            fill.setdefault(0, []).extend(["s_waitcnt vmcnt(0)", "s_barrier"])
            off = 1
        if nxt is not None:
            R = frag_reads(nxt[0], nxt[1], fs ^ 1)
            for i, r in enumerate(R): fill.setdefault(i+off, []).append(r)
        return (pre, M, fill)
    def emit(subs):
        for pre, M, fill in subs:
            a.ext(pre)
            a.ext(interleave(M, fill))
    def rot(stage, which, dma):
        subs = [sub(stage, 3, which, (stage ^ 1, 0))]
        for s in range(3): subs.append(sub(stage ^ 1, s, which, (stage ^ 1, s+1)))
        if dma:
            D = dma_list(stage)
            pos = 1
            for (pre, ins) in D:
                pp = pos - 1
                if pre: subs[pp//16][2].setdefault(pp%16, []).extend(pre)
                subs[pos//16][2].setdefault(pos%16, []).append(ins)
                pos += dma_stride
            assert pos <= 64
            pos = min(pos, 63)
            subs[pos//16][2].setdefault(pos%16, []).extend(adv)
        return subs
    for which in range(2):
        tag = f"{name}_{'k' if which==0 else 'v'}"
        if which == 1: a.label(f"{name}_vpath")
        emit([sub(0, s, which, (0, s+1), first=(s == 0)) for s in range(3)])
        a("s_mov_b32 s33, 7")
        a(".p2align 6")
        a.label(f"{tag}_loop")
        emit(rot(0, which, True) + rot(1, which, True))
        a("s_sub_u32 s33, s33, 1")
        a("s_cmp_lg_u32 s33, 0")
        a(f"s_cbranch_scc1 {tag}_loop")
        emit(rot(0, which, False))
        emit([sub(1, 3, which, None)])
        if which == 0: a(f"s_branch {name}_epi")
    a.label(f"{name}_epi")
    if stamp: a("s_memtime s[64:65]")
    a("s_barrier")
    a("s_lshl_b32 s59, s78, 9")
    a("s_add_u32 s4, s48, s59"); a("s_addc_u32 s5, s49, 0")
    a(f"s_sub_u32 s6, {448*8192}, s59"); a("s_mov_b32 s7, 0x20000")
    a("s_mul_i32 s59, s78, 224")
    a("s_and_b32 s33, s78, 1"); a("s_lshl_b32 s33, s33, 5")
    a("s_sub_u32 s59, s59, s33")
    a("s_add_u32 s8, s74, s59"); a("s_addc_u32 s9, s75, 0")
    a(f"s_sub_u32 s10, {448*3584}, s59"); a("s_mov_b32 s11, 0x20000")
    a("s_mov_b32 s84, s76"); a("s_mov_b32 s85, s77"); a("s_mov_b32 s86, 896"); a("s_mov_b32 s87, 0x20000")
    a("s_lshl_b32 s33, s56, 17")
    a(f"s_mul_i32 s59, s56, {16*3584}")
    for i in range(4):
        a(f"s_add_u32 s{16+i}, s33, {4*i*8192 - i*1024}")
        a(f"s_add_u32 s{20+i}, s59, {4*i*3584 - i*1024}")
    a("s_lshl_b32 s32, s56, 12")
    NSLOT = 21; RING = 8
    def dma_slot(sg):
        ph = sg // 7
        L = [f"s_add_u32 m0, s32, {(sg % RING) * 16384}"]
        vo = 250 + ph
        for i in range(4):
            if ph < 2: ins = f"buffer_load_dwordx4 v{vo}, s[4:7], s{16+i} offen offset:{i*1024} lds"
            else: ins = f"buffer_load_dwordx4 v{vo}, s[8:11], s{20+i} offen offset:{i*1024} lds"
            L.append(VM(("w", sg), ins))
        L.append(f"v_add_u32 v{vo}, {64*8192 if ph < 2 else 64*3584}, v{vo}")
        return L
    a("s_mov_b32 m0, 0x20000"); a("s_nop 0")
    a.put(VM("gate", "buffer_load_dwordx4 v31, s[84:87], 0 offen lds"))
    for sg in range(RING - 1):
        L = dma_slot(sg)
        a(L[0]); a("s_nop 0"); a.ext(L[1:])
    a("s_lshl_b32 s59, s55, 17")
    a("s_lshl_b32 s33, s57, 16")
    a("s_add_u32 s59, s59, s33")
    a("s_lshl_b32 s33, s58, 13")
    a("s_add_u32 s59, s59, s33")
    a("s_nop 7")
    n = 0
    for dt in range(4):
        for kt in range(4):
            acc = (dt*4+kt)*16
            tb = 32 + (n % 4)*24
            for i in range(16): a(f"v_accvgpr_read_b32 v{tb+i}, a{acc+i}")
            for i in range(8): a(f"v_cvt_pk_bf16_f32 v{tb+16+i}, v{tb+2*i}, v{tb+2*i+1}")
            for f in range(2):
                a(f"s_add_u32 s33, s59, {kt*16384 + (dt*2+f)*1024}")
                a.put(VM("kvst", f"buffer_store_dwordx4 v[{tb+16+4*f}:{tb+16+4*f+3}], v31, s[12:15], s33 offen {store_flags}"))
            n += 1
    if stamp: a("s_memtime s[66:67]")
    a(f"s_add_u32 s12, s42, {WS_Q}"); a("s_addc_u32 s13, s43, 0"); a(f"s_mov_b32 s14, {32<<20}")
    a("s_lshl_b32 s24, s78, 20"); a("s_lshl_b32 s33, s80, 14"); a("s_add_u32 s24, s24, s33")
    a("s_lshl_b32 s25, s78, 19"); a("s_lshl_b32 s33, s80, 13"); a("s_add_u32 s25, s25, s33"); a(f"s_add_u32 s25, s25, {WS_H-WS_Q}")
    a("s_lshl_b32 s26, s78, 14"); a("s_lshl_b32 s33, s80, 8"); a("s_add_u32 s26, s26, s33"); a(f"s_add_u32 s26, s26, {WS_G-WS_Q}")
    a("s_lshl_b32 s27, s2, 6"); a(f"s_add_u32 s27, s27, {WS_F-WS_Q}")
    FR = 32
    NG = 84
    def reads(g):
        ph, ks = g // 28, g % 28
        sg = g // 4; k4 = g % 4
        ring = sg % RING
        base = 242 if ring < 4 else 246
        off0 = (ring % 4) * 16384 + k4 * 4096
        R = []
        for ft in range(4):
            b = FR + (g % 3) * 16 + ft * 4
            for r in range(2):
                R.append(LDS(("a", g), f"ds_read_b64_tr_b16 v[{b+2*r}:{b+2*r+1}], v{base+ft} offset:{off0 + r*1024}"))
        if ph == 0:
            b = 80 + (g % 3) * 4
            R.append(LDS(("a", g), f"ds_read_b128 v[{b}:{b+3}], v253 offset:{ks*32}"))
        return R
    def mf(g):
        ph, ks = g // 28, g % 28
        M = []
        for ft in range(4):
            b = FR + (g % 3) * 16 + ft * 4
            acc = ph * 64 + ft * 16
            cin = "0" if ks == 0 else f"a[{acc}:{acc+15}]"
            M.append(f"v_mfma_f32_32x32x16_bf16 a[{acc}:{acc+15}], v[{b}:{b+3}], v[{128+4*ks}:{128+4*ks+3}], {cin}")
        return M
    def q_epi(ph):
        L = []
        for ft in range(4):
            acc = ph * 64 + ft * 16
            tb = 96 + (ft % 2) * 16
            for f in range(2):
                for i in range(8): L.append(f"v_accvgpr_read_b32 v{tb+8*f+i}, a{acc+8*f+i}")
                for i in range(8): L.append(f"v_mul_f32 v{tb+8*f+i}, s28, v{tb+8*f+i}")
                for i in range(4): L.append(f"v_cvt_pk_bf16_f32 v{tb+8*f+i}, v{tb+8*f+2*i}, v{tb+8*f+2*i+1}")
                fr = (ph * 4 + ft) * 2 + f
                if fr % 4 == 0: L.append(f"s_add_u32 s33, s24, {fr*1024}")
                L.append(VM("qst", f"buffer_store_dwordx4 v[{tb+8*f}:{tb+8*f+3}], v31, s[12:15], s33 offen offset:{(fr%4)*1024}"))
        return L
    a(f"s_mov_b32 s28, 0x{f2u(QSCALE):08x}")
    a("v_mov_b32 v92, 0"); a("v_mov_b32 v93, 0")
    a.put(WVM(("w", 0)))
    a("s_barrier")
    a.ext(reads(0)); a.ext(reads(1))
    backbone = []; fill = {}
    for g in range(NG): backbone += mf(g)
    for g in range(NG):
        p0 = 4 * g
        pre = [WLDS(("a", g))]
        fill.setdefault(p0 - 1, []).extend(pre)
        sg, k4 = g // 4, g % 4
        if k4 == 2 and sg + 1 < NSLOT:
            fill.setdefault(p0, []).extend([WVM(("w", sg + 1)), "s_barrier"])
        if g + 2 < NG:
            R = reads(g + 2)
            for i, r in enumerate(R): fill.setdefault(p0 + min(i // 2, 3), []).append(r)
        if k4 == 2 and sg + RING - 1 < NSLOT:
            D = dma_slot(sg + RING - 1)
            fill.setdefault(p0 + 1, []).append(D[0])
            for i in range(4): fill.setdefault(p0 + 2 + i, []).append(D[1 + i])
            fill.setdefault(p0 + 5, []).append(D[5])
        if g < 28:
            b = 80 + (g % 3) * 4
            for i in range(4):
                fill.setdefault(p0 + i, []).append(f"v_dot2_f32_bf16 v{92 + (i&1)}, v{128+4*g+i}, v{b+i}, v{92 + (i&1)}")
    gfin = ["v_add_f32 v92, v92, v93", "v_mov_b32 v93, v92", "s_nop 1", "v_permlane32_swap_b32 v92, v93", "s_nop 1",
            "v_add_f32 v92, v92, v93", f"v_mul_f32 v92, 0x{f2u(-1.4426950408889634):08x}, v92", "v_exp_f32 v92, v92", "s_nop 0",
            "v_add_f32 v92, 1.0, v92", "v_rcp_f32 v92, v92", "s_nop 0", "v_sub_f32 v93, 1.0, v92",
            VM("gst", "buffer_store_dword v92, v94, s[12:15], s26 offen")]
    fill.setdefault(112, []).append("v_lshlrev_b32 v94, 2, v6")
    spread(fill, 113, 120, gfin)
    spread(fill, 120, 220, q_epi(0))
    spread(fill, 228, 332, q_epi(1))
    def order(lst):
        w = [x for x in lst if not isinstance(x, str) and x[0] == "wlds"]
        o = [x for x in lst if isinstance(x, str) or x[0] != "wlds"]
        return o + w
    fill = {k: order(v) for k, v in fill.items()}
    a.ext(interleave(backbone, fill))
    a("s_nop 7"); a("s_nop 3")
    for ft in range(4):
        acc = 128 + ft * 16
        tb = 96 + (ft % 2) * 16
        for f in range(2):
            for i in range(8): a(f"v_accvgpr_read_b32 v{tb+8*f+i}, a{acc+8*f+i}")
            for i in range(8): a(f"v_max_f32 v{tb+8*f+i}, 0, v{tb+8*f+i}")
            for i in range(8): a(f"v_mul_f32 v{tb+8*f+i}, v93, v{tb+8*f+i}")
            for i in range(4): a(f"v_cvt_pk_bf16_f32 v{tb+8*f+i}, v{tb+8*f+2*i}, v{tb+8*f+2*i+1}")
            fr = ft * 2 + f
            if fr % 4 == 0: a(f"s_add_u32 s33, s25, {fr*1024}")
            a(f"buffer_store_dwordx4 v[{tb+8*f}:{tb+8*f+3}], v31, s[12:15], s33 offen offset:{(fr%4)*1024}")
    a("s_cmp_eq_u32 s56, 0")
    a(f"s_cbranch_scc0 {name}_noflag")
    a("v_mov_b32 v94, 0"); a("v_lshlrev_b32 v95, 2, v6")
    a("v_cmp_gt_u32 vcc, 16, v6")
    a("s_and_saveexec_b64 s[72:73], vcc")
    a("buffer_store_dword v94, v95, s[12:15], s27 offen")
    a("s_mov_b64 exec, s[72:73]")
    a.label(f"{name}_noflag")
    if stamp:
        a("s_memtime s[68:69]")
        a("s_waitcnt vmcnt(0)")
        a("s_memtime s[82:83]")
        a("s_memrealtime s[70:71]")
        a("s_waitcnt lgkmcnt(0)")
        a("s_cmp_eq_u32 s56, 0")
        a(f"s_cbranch_scc0 {name}_done")
        a("s_sub_u32 s64, s64, s60"); a("s_sub_u32 s66, s66, s60"); a("s_sub_u32 s68, s68, s60"); a("s_sub_u32 s82, s82, s60"); a("s_sub_u32 s70, s70, s62")
        a("s_add_u32 s12, s42, 0x8000000"); a("s_addc_u32 s13, s43, 0"); a("s_mov_b32 s14, 0x10000")
        a("v_mov_b32 v96, s64"); a("v_mov_b32 v97, s66"); a("v_mov_b32 v98, s68"); a("v_mov_b32 v99, s82")
        a("v_mov_b32 v100, s62"); a("v_mov_b32 v101, s63"); a("v_mov_b32 v102, s70"); a("v_mov_b32 v103, s61")
        a("s_lshl_b32 s33, s2, 5")
        a("v_mov_b32 v104, 0")
        a("v_cmp_eq_u32 vcc, 0, v6")
        a("s_and_saveexec_b64 s[72:73], vcc")
        a("buffer_store_dwordx4 v[96:99], v104, s[12:15], s33 offen")
        a("buffer_store_dwordx4 v[100:103], v104, s[12:15], s33 offen offset:16")
        a("s_waitcnt vmcnt(0)")
    a.label(f"{name}_done")
    a("s_endpgm")
    a(kernel_desc(name, 512, 256))
    return a.text()

K1_LAUNCH = "; @launch kernel=k1_kernel grid=(256,1,1) block=(256,1,1) lds=132096"
if __name__ == "__main__":
    import sys, json
    opt = json.loads(sys.argv[2]) if len(sys.argv) > 2 else {}
    hdr = K1_LAUNCH + "\n.amdgcn_target \"amdgcn-amd-amdhsa--gfx950\"\n.text\n"
    open(sys.argv[1], "w").write(hdr + gen_k1("k1_kernel", opt))
```

```python
from asmlib import *
from gen1 import WS_K, WS_V, WS_Q, WS_H, WS_G, WS_F, WS_OP, WS_ML, WS_P, f2u

vLANE, vL16, vK, vV, vQL, vLS, vT, vNINF, vT0, vT1, vG = 1, 2, 3, 4, 5, 6, 7, 8, 9, 10, 11
S0, S1, NEGM, P0, P1, PT, FR = 16, 32, 48, 64, 72, 80, 96
HF = 160
vD3 = 188
vA3 = 195
CT = 16
aO, aQ, aQ2 = 0, 128, 192
sH, sR, sW, sTB = 16, 17, 18, 19
sKg, sVg, sKwrap, sKrst, sVwrap, sVrst = 20, 21, 22, 23, 24, 25
sKl, sVl, sKr, sVr = 26, 27, 28, 29
sCnt, sJs, sLw, sTmp = 30, 31, 32, 33
sOnes, sThr, sSeg2, sPub = 34, 35, 36, 37
sN, sT2, sT3, sPair = 38, 39, 40, 41
KRING = 0; VRING = 65536; NV = 5
LDS2 = 147456

def MF(d, A, B, c): return f"v_mfma_f32_32x32x16_bf16 {d}, {A}, {B}, {c}"
def v(b, n=1): return vr(b, n)
def fr(i): return vr(FR + 4 * (i % 16), 4)

class Ring:
    def __init__(self): self.p = 0

def adv_k():
    return [f"s_add_u32 s{sKr}, s{sKr}, 16384", f"s_and_b32 s{sKr}, s{sKr}, 0xffff", f"v_add_u32 v{vK}, s{sKr}, v{vL16}"]
def adv_v():
    return [f"s_add_u32 s{sVr}, s{sVr}, 16384", f"s_cmp_eq_u32 s{sVr}, {VRING + NV*16384}", f"s_cselect_b32 s{sVr}, {VRING}, s{sVr}", f"v_add_u32 v{vV}, s{sVr}, v{vL16}"]
def dma_k():
    pre = [f"s_mov_b32 m0, s{sKl}"]
    ins = [f"buffer_load_dwordx4 v{vL16}, s[4:7], s{sKg} offen offset:{i*1024} lds" for i in range(4)]
    post = [f"s_add_u32 s{sKg}, s{sKg}, 16384", f"s_cmp_eq_u32 s{sKg}, s{sKwrap}", f"s_cselect_b32 s{sKg}, s{sKrst}, s{sKg}",
            f"s_add_u32 s{sKl}, s{sKl}, 16384", f"s_and_b32 s{sKl}, s{sKl}, 0xffff"]
    return pre, ins, post
def dma_v():
    pre = [f"s_mov_b32 m0, s{sVl}"]
    ins = [f"buffer_load_dwordx4 v{vL16}, s[4:7], s{sVg} offen offset:{i*1024} lds" for i in range(4)]
    post = [f"s_add_u32 s{sVg}, s{sVg}, 16384", f"s_cmp_eq_u32 s{sVg}, s{sVwrap}", f"s_cselect_b32 s{sVg}, s{sVrst}, s{sVg}",
            f"s_add_u32 s{sVl}, s{sVl}, 16384", f"s_cmp_ge_u32 s{sVl}, {VRING + NV*16384}", f"s_cselect_b32 s{sT2}, {NV*16384}, 0", f"s_sub_u32 s{sVl}, s{sVl}, s{sT2}"]
    return pre, ins, post
def put(fill, g, *ins):
    fill.setdefault(g, []).extend(ins)
def place_dma(fill, k=True, vv=True, nm=16):
    if k:
        pre, ins, post = dma_k()
        put(fill, 0, *pre)
        for i in range(4): put(fill, 1 + 2 * i, ins[i])
        put(fill, 7, *post[:3]); put(fill, 10, *post[3:])
    if vv:
        o = 8 if k else 0
        pre, ins, post = dma_v()
        put(fill, o, *pre)
        for i in range(4): put(fill, o + 1 + 2 * i, ins[i])
        put(fill, o + 7, *post[:3]); put(fill, min(o + 9, nm - 1), *post[3:])

def sm_list(Sc, Pc):
    L = []
    e = [f"v_exp_f32 v{PT+i}, v{Sc+i}" for i in range(16)]
    c = [f"v_cvt_pk_bf16_f32 v{Pc+j}, v{PT+2*j}, v{PT+2*j+1}" for j in range(8)]
    d = [f"v_dot2_f32_bf16 v{vT}, v{Pc+j}, s{sOnes}, {'0' if j == 0 else 'v%d' % vT}" for j in range(8)]
    L += [e[0], e[1], e[2], e[3], c[0]]
    for j in range(1, 7):
        L += [e[2*j+2], e[2*j+3], c[j], d[j-1]]
    L += [c[7], d[6], d[7]]
    return L

def mask_block(Sc):
    L = [f"s_sub_u32 s{sTmp}, s{sLw}, s{sJs}", f"s_lshl_b32 s{sTmp}, s{sTmp}, 5", f"v_add_u32 v{vT0}, s{sTmp}, v{vQL}"]
    for i in range(16):
        ci = 8 * (i >> 2) + (i & 3)
        L += [f"v_cmp_gt_i32 vcc, {ci}, v{vT0}", f"v_cndmask_b32 v{Sc+i}, v{Sc+i}, v{vNINF}, vcc"]
    return L
def rowmax(Sc):
    L = [f"v_max3_f32 v{vT0}, v{Sc}, v{Sc+1}, v{Sc+2}"]
    for i in range(3, 15, 2): L.append(f"v_max3_f32 v{vT0}, v{vT0}, v{Sc+i}, v{Sc+i+1}")
    L += [f"v_max_f32 v{vT0}, v{vT0}, v{Sc+15}", f"v_mov_b32 v{vT1}, v{vT0}", "s_nop 1", f"v_permlane32_swap_b32 v{vT0}, v{vT1}", "s_nop 1",
          f"v_max_f32 v{vT0}, v{vT0}, v{vT1}"]
    return L

def gen_k2(name="k2_kernel", opt=None):
    opt = opt or {}
    stamp = opt.get("stamp", False)
    a = TAsm()
    ool = []
    a(kernel_header(name))
    a("s_cmp_ge_u32 s2, 256")
    a(f"s_cbranch_scc1 {name}_done")
    if stamp:
        a("s_memtime s[60:61]"); a("s_memrealtime s[62:63]")
    a("s_load_dwordx2 s[42:43], s[0:1], 96")
    a("s_load_dwordx2 s[44:45], s[0:1], 40")
    a("s_load_dwordx2 s[46:47], s[0:1], 64")
    if opt.get("perm"):
        a(f"s_mul_i32 s2, s2, {opt['perm']}"); a("s_and_b32 s2, s2, 255")
    a("s_and_b32 s50, s2, 7"); a("s_lshr_b32 s51, s2, 3")
    a(f"s_lshr_b32 s{sH}, s51, 4"); a("s_lshl_b32 s52, s50, 1"); a(f"s_add_u32 s{sH}, s{sH}, s52")
    a(f"s_and_b32 s{sR}, s51, 15")
    a(f"v_lshrrev_b32 v12, 6, v0"); a(f"v_and_b32 v{vLANE}, 63, v0"); a("s_nop 0")
    a(f"v_readfirstlane_b32 s{sW}, v12")
    a(f"v_lshlrev_b32 v{vL16}, 4, v{vLANE}")
    a(f"v_and_b32 v12, 31, v{vLANE}"); a(f"v_lshrrev_b32 v13, 5, v{vLANE}"); a("v_lshlrev_b32 v13, 2, v13")
    a(f"v_sub_u32 v{vQL}, v12, v13")
    a(f"v_mov_b32 v{vNINF}, 0xff800000")
    a(f"s_mov_b32 s{sOnes}, 0x3f803f80"); a(f"s_mov_b32 s{sThr}, 0x{f2u(2.0**30):08x}")
    a(f"s_cmp_lt_u32 s{sR}, 8"); a(f"s_cselect_b32 s{sTB}, 1, 0")
    a(f"s_sub_u32 s53, 15, s{sR}"); a(f"s_cmp_lt_u32 s{sR}, 8"); a(f"s_cselect_b32 s53, s53, s{sR}")
    a("s_sub_u32 s54, s53, 8")
    a(f"s_lshl_b32 s55, s{sH}, 3"); a(f"s_add_u32 s{sPair}, s55, s54")
    a("s_lshl_b32 s55, s53, 2")
    a(f"s_add_u32 s{sLw}, s55, s{sW}")
    a(f"s_sub_u32 s56, s55, 30")
    a(f"s_cmp_eq_u32 s{sTB}, 1")
    a(f"s_cselect_b32 s{sN}, s56, 34"); a(f"s_cselect_b32 s{sJs}, 34, 0")
    a(f"s_lshl_b32 s56, s{sH}, 20"); a(f"s_lshl_b32 s57, s{sW}, 12"); a(f"s_add_u32 s{sKrst}, s56, s57")
    a(f"s_add_u32 s{sVrst}, s{sKrst}, {WS_V}")
    a(f"s_lshl_b32 s56, s{sJs}, 14"); a(f"s_add_u32 s{sKg}, s{sKrst}, s56"); a(f"s_add_u32 s{sVg}, s{sVrst}, s56")
    a("s_add_u32 s56, s55, 4"); a("s_lshl_b32 s56, s56, 14")
    a(f"s_add_u32 s{sKwrap}, s{sKrst}, s56"); a(f"s_add_u32 s{sVwrap}, s{sVrst}, s56")
    a(f"s_cmp_eq_u32 s{sTB}, 1")
    a(f"s_cselect_b32 s{sKwrap}, s{sKwrap}, -1"); a(f"s_cselect_b32 s{sVwrap}, s{sVwrap}, -1")
    a(f"s_mov_b32 s{sKl}, s57"); a(f"s_add_u32 s{sVl}, s57, {VRING}")
    a(f"s_mov_b32 s{sKr}, 0"); a(f"s_mov_b32 s{sVr}, {VRING}")
    a(f"v_mov_b32 v{vK}, v{vL16}"); a(f"v_add_u32 v{vV}, {VRING}, v{vL16}")
    a(f"s_mov_b32 s{sSeg2}, 0"); a(f"s_mov_b32 s{sPub}, 0")
    a("s_waitcnt lgkmcnt(0)")
    a("s_mov_b32 s4, s42"); a("s_mov_b32 s5, s43"); a("s_mov_b32 s6, 0x10000000"); a("s_mov_b32 s7, 0x20000")
    a(f"s_lshl_b32 s56, s{sH}, 20"); a("s_lshl_b32 s57, s53, 2"); a(f"s_add_u32 s57, s57, s{sW}"); a("s_lshl_b32 s57, s57, 14")
    a("s_add_u32 s56, s56, s57"); a(f"s_add_u32 s56, s56, {WS_Q}")
    for i in range(16):
        if i % 4 == 0 and i: a("s_add_u32 s56, s56, 4096")
        a(f"buffer_load_dwordx4 a[{aQ+4*i}:{aQ+4*i+3}], v{vL16}, s[4:7], s56 offen offset:{(i%4)*1024}")
    a(f"s_lshl_b32 s58, s{sR}, 2"); a(f"s_add_u32 s58, s58, s{sW}")
    def full_k():
        pre, ins, post = dma_k(); return pre + ["s_nop 0"] + ins + post
    def full_v():
        pre, ins, post = dma_v(); return pre + ["s_nop 0"] + ins + post
    for f in (full_k, full_k, full_k, full_v, full_k, full_v, full_v): a.ext(f())
    a(f"s_and_b32 s56, s{sH}, 1"); a("s_lshl_b32 s56, s56, 10")
    a(f"s_lshl_b32 s57, s{sH}, 19"); a("s_add_u32 s56, s56, s57"); a("s_lshl_b32 s57, s58, 13"); a("s_add_u32 s56, s56, s57"); a(f"s_add_u32 s56, s56, {WS_H}")
    for i in range(7):
        if i == 4: a("s_add_u32 s56, s56, 4096")
        a(f"buffer_load_dwordx4 v[{HF+4*i}:{HF+4*i+3}], v{vL16}, s[4:7], s56 offen offset:{(i%4)*1024}")
    a(f"s_lshl_b32 s56, s{sH}, 14"); a("s_lshl_b32 s57, s58, 8"); a("s_add_u32 s56, s56, s57"); a(f"s_add_u32 s56, s56, {WS_G}")
    a(f"v_lshlrev_b32 v12, 2, v{vLANE}")
    a(f"buffer_load_dword v{vG}, v12, s[4:7], s56 offen")
    a(f"s_cmp_eq_u32 s{sTB}, 1"); a(f"s_cbranch_scc0 {name}_noq2")
    a(f"s_lshl_b32 s56, s{sH}, 20"); a("s_lshl_b32 s57, s58, 14"); a("s_add_u32 s56, s56, s57"); a(f"s_add_u32 s56, s56, {WS_Q}")
    for i in range(16):
        if i % 4 == 0 and i: a("s_add_u32 s56, s56, 4096")
        a(f"buffer_load_dwordx4 a[{aQ2+4*i}:{aQ2+4*i+3}], v{vL16}, s[4:7], s56 offen offset:{(i%4)*1024}")
    a("s_waitcnt vmcnt(48)"); a(f"s_branch {name}_st")
    a.label(f"{name}_noq2")
    a("s_waitcnt vmcnt(32)")
    a.label(f"{name}_st")
    a("s_barrier")
    def wait3(tag, na, nb, n2):
        a(f"s_cmp_eq_u32 s{sSeg2}, 0"); a(f"s_cbranch_scc0 {name}_{tag}_2")
        a(f"s_cmp_eq_u32 s{sTB}, 0"); a(f"s_cbranch_scc0 {name}_{tag}_b")
        a(f"s_waitcnt vmcnt({na})"); a(f"s_branch {name}_{tag}_e")
        a.label(f"{name}_{tag}_b")
        a(f"s_waitcnt vmcnt({nb})"); a(f"s_branch {name}_{tag}_e")
        a.label(f"{name}_{tag}_2")
        if n2 is not None: a(f"s_waitcnt vmcnt({n2})")
        a.label(f"{name}_{tag}_e")
    a.label(f"{name}_seg")
    a(f"v_mov_b32 v{vLS}, 0")
    def kread(i, ring): return f"ds_read_b128 {fr(ring)}, v{vK} offset:{i*1024}"
    def vread(m, ring):
        f, dt = m // 8, m % 8
        return f"ds_read_b128 {fr(ring)}, v{vV} offset:{(dt*2+f)*1024}"
    def qk(Sn, i, ring, first_zero=False):
        c = ("0" if first_zero else v(NEGM, 16)) if i == 0 else v(Sn, 16)
        return MF(v(Sn, 16), fr(ring), ar(aQ + 4*i, 4), c)
    def pv(Pp, m, ring):
        f, dt = m // 8, m % 8
        return MF(ar(aO + 16*dt, 16), fr(ring), v(Pp + 4*f, 4), ar(aO + 16*dt, 16))
    def waits(fill, n, last_pref):
        for g in range(0, n, 4):
            out = min(4, last_pref - (g + 3))
            put(fill, g - 1, f"s_waitcnt lgkmcnt({max(out,0)})")
    def order(fill):
        r = {}
        for k, l in fill.items():
            w = [x for x in l if x.startswith("s_waitcnt lgkmcnt")]
            r[k] = [x for x in l if not x.startswith("s_waitcnt lgkmcnt")] + w
        return r
    fill = {}
    put(fill, -1, *[kread(i, i) for i in range(8)])
    for g in range(8): put(fill, g, kread(g + 8, g + 8))
    put(fill, 8, *adv_k())
    waits(fill, 16, 15)
    z = [f"v_accvgpr_write_b32 a{aO+i}, 0" for i in range(128)]
    spread(fill, 0, 16, z[:64])
    a.ext(interleave([qk(S0, i, i, True) for i in range(16)], order(fill)))
    wait3("q0", 28, 44, None)
    a("s_barrier")
    a.ext([kread(i, i) for i in range(8)])
    a("s_nop 7"); a("s_nop 3")
    a(f"s_cmp_ge_u32 s{sJs}, s{sLw}"); a(f"s_cbranch_scc0 {name}_f_nomask")
    a.ext(mask_block(S0))
    a.label(f"{name}_f_nomask")
    a.ext(rowmax(S0))
    a(f"v_max_f32 v{vT0}, 0x{f2u(-1e30):08x}, v{vT0}")
    for i in range(16): a(f"v_sub_f32 v{S0+i}, v{S0+i}, v{vT0}")
    a(f"v_sub_f32 v{vT1}, 0, v{vT0}")
    for i in range(16): a(f"v_mov_b32 v{NEGM+i}, v{vT1}")
    a("s_nop 1")
    fill = {}
    for g in range(8): put(fill, g, kread(g + 8, g + 8))
    put(fill, 8, *adv_k())
    waits(fill, 16, 15)
    place_dma(fill, k=True, vv=False)
    spread(fill, 0, 16, sm_list(S0, P0))
    spread(fill, 0, 16, z[64:])
    a.ext(interleave([qk(S1, i, i) for i in range(16)], order(fill)))
    a("s_nop 2")
    a(f"v_add_f32 v{vLS}, v{vLS}, v{vT}")
    a(f"s_add_u32 s{sJs}, s{sJs}, 1")
    wait3("ha", 24, 40, 49)
    a("s_barrier")
    a(f"s_sub_u32 s{sCnt}, s{sN}, 2"); a(f"s_lshr_b32 s{sCnt}, s{sCnt}, 1")
    a(f"s_cmp_eq_u32 s{sCnt}, 0"); a(f"s_cbranch_scc1 {name}_hb")
    a.ext([kread(i, i) for i in range(8)])
    def step(par, rb, site):
        Sn, Sc, Pc, Pp = (S0, S1, P1, P0) if par else (S1, S0, P0, P1)
        M = [qk(Sn, i, rb + i) for i in range(16)] + [pv(Pp, m, rb + 16 + m) for m in range(16)]
        fill = {}
        put(fill, -1, f"s_cmp_ge_u32 s{sJs}, s{sLw}", f"s_cbranch_scc1 {name}_mask{site}", f"{name}_maskret{site}:")
        ool.append([f"{name}_mask{site}:"] + mask_block(Sc) + [f"s_branch {name}_maskret{site}"])
        for g in range(8): put(fill, g, kread(g + 8, rb + g + 8))
        put(fill, 8, *adv_k())
        put(fill, 7, *[])
        for g in range(8, 24): put(fill, g, vread(g - 8, rb + g + 8))
        put(fill, 23, "s_waitcnt vmcnt(16)", "s_barrier")
        if par == 0:
            put(fill, 24, f"s_cmp_eq_u32 s{sPub}, 1", f"s_cbranch_scc1 {name}_pub", f"{name}_pubret:")
        put(fill, 25, *adv_v())
        for g in range(24, 32): put(fill, g, kread(g - 24, rb + g + 8))
        for g in range(0, 32, 4): put(fill, g - 1, "s_waitcnt lgkmcnt(4)")
        place_dma(fill, True, True, 32)
        sm = sm_list(Sc, Pc)
        spread(fill, 0, 29, sm)
        put(fill, 30, f"s_add_u32 s{sJs}, s{sJs}, 1")
        put(fill, 31, f"v_cmp_nge_f32 vcc, s{sThr}, v{vT}", f"s_cbranch_vccnz {name}_rare{site}", f"{name}_rareret{site}:", f"v_add_f32 v{vLS}, v{vLS}, v{vT}")
        ool.append([f"{name}_rare{site}:"] + rare_block(Sc, Sn, Pc) + [f"s_branch {name}_rareret{site}"])
        return interleave(M, order2(fill))
    def order2(fill):
        r = {}
        for k, l in fill.items():
            w = [x for x in l if x.startswith("s_waitcnt lgkmcnt")]
            o = [x for x in l if not x.startswith("s_waitcnt lgkmcnt")]
            r[k] = (w + o) if False else (o + w)
        return r
    def rare_block(Sc, Sn, Pc):
        L = ["s_nop 7", "s_nop 7"] + rowmax(Sc) + [f"v_max_f32 v{vT0}, 0, v{vT0}"]
        for i in range(16): L.append(f"v_sub_f32 v{Sc+i}, v{Sc+i}, v{vT0}")
        if Sn is not None:
            for i in range(16): L.append(f"v_sub_f32 v{Sn+i}, v{Sn+i}, v{vT0}")
        for i in range(16): L.append(f"v_sub_f32 v{NEGM+i}, v{NEGM+i}, v{vT0}")
        L += [f"v_sub_f32 v{vT1}, 0, v{vT0}", f"v_exp_f32 v{vT1}, v{vT1}", "s_nop 0", f"v_mul_f32 v{vLS}, v{vLS}, v{vT1}"]
        for i in range(0, 128, 4):
            for k in range(4): L.append(f"v_accvgpr_read_b32 v{12+k}, a{aO+i+k}")
            for k in range(4): L.append(f"v_mul_f32 v{12+k}, v{12+k}, v{vT1}")
            for k in range(4): L.append(f"v_accvgpr_write_b32 a{aO+i+k}, v{12+k}")
        for x in sm_list(Sc, Pc): L += [x, "s_nop 0"]
        L += ["s_nop 3"]
        return L
    a(".p2align 6")
    a.label(f"{name}_loop")
    K2_RING_NOTE = None
    body = step(1, 0, 1) + step(0, 32, 2)
    a.ext(body)
    a(f"s_sub_u32 s{sCnt}, s{sCnt}, 1"); a(f"s_cmp_lg_u32 s{sCnt}, 0"); a(f"s_cbranch_scc1 {name}_loop")
    a.label(f"{name}_hb")
    a("s_nop 7"); a("s_nop 3")
    a.ext([vread(i, i) for i in range(8)])
    a(f"s_cmp_ge_u32 s{sJs}, s{sLw}"); a(f"s_cbranch_scc0 {name}_hb_nomask")
    a.ext(mask_block(S1))
    a.label(f"{name}_hb_nomask")
    fill = {}
    for g in range(8): put(fill, g, vread(g + 8, g + 8))
    put(fill, 8, *adv_v())
    waits(fill, 16, 15)
    place_dma(fill, True, True)
    spread(fill, 0, 16, sm_list(S1, P1))
    a.ext(interleave([pv(P0, m, m) for m in range(16)], order(fill)))
    a("s_nop 2")
    a(f"v_cmp_nge_f32 vcc, s{sThr}, v{vT}"); a(f"s_cbranch_vccnz {name}_rare3"); a.label(f"{name}_rareret3")
    a(f"v_add_f32 v{vLS}, v{vLS}, v{vT}")
    ool.append([f"{name}_rare3:"] + rare_block(S1, None, P1) + [f"s_branch {name}_rareret3"])
    a("s_waitcnt vmcnt(16)"); a("s_barrier")
    fill = {}
    put(fill, -1, *[vread(i, i) for i in range(8)])
    for g in range(8): put(fill, g, vread(g + 8, g + 8))
    put(fill, 8, *adv_v())
    waits(fill, 16, 15)
    place_dma(fill, False, True)
    a.ext(interleave([pv(P1, m, m) for m in range(16)], order(fill)))
    a("s_nop 7"); a("s_nop 7")
    if stamp: a("s_memtime s[64:65]")
    a(f"s_cmp_eq_u32 s{sTB}, 0"); a(f"s_cbranch_scc1 {name}_fin")
    a(f"s_cmp_eq_u32 s{sSeg2}, 1"); a(f"s_cbranch_scc1 {name}_fin")
    a(f"s_lshl_b32 s56, s{sPair}, 17"); a(f"s_lshl_b32 s57, s{sW}, 15"); a("s_add_u32 s56, s56, s57"); a(f"s_add_u32 s56, s56, {WS_OP}")
    for i in range(32):
        if i % 4 == 0 and i: a("s_add_u32 s56, s56, 4096")
        a(f"buffer_store_dwordx4 a[{aO+4*i}:{aO+4*i+3}], v{vL16}, s[4:7], s56 offen offset:{(i%4)*1024} sc1")
    a(f"v_sub_f32 v12, 0, v{NEGM}"); a(f"v_mov_b32 v13, v{vLS}")
    a(f"s_lshl_b32 s56, s{sPair}, 11"); a(f"s_lshl_b32 s57, s{sW}, 9"); a("s_add_u32 s56, s56, s57"); a(f"s_add_u32 s56, s56, {WS_ML}")
    a(f"v_lshlrev_b32 v14, 3, v{vLANE}")
    a("buffer_store_dwordx2 v[12:13], v14, s[4:7], s56 offen sc1")
    a("s_waitcnt vmcnt(49)")
    for i in range(64): a(f"v_accvgpr_mov_b32 a{aQ+i}, a{aQ2+i}")
    a(f"s_mov_b32 s{sSeg2}, 1"); a(f"s_mov_b32 s{sPub}, 1")
    a(f"s_mov_b32 s{sJs}, 0"); a(f"s_sub_u32 s{sN}, 34, s{sN}")
    a(f"s_lshl_b32 s{sLw}, s{sR}, 2"); a(f"s_add_u32 s{sLw}, s{sLw}, s{sW}")
    a("s_nop 1")
    a(f"s_branch {name}_seg")
    ool.append([f"{name}_pub:", f"s_mov_b32 s{sPub}, 0", f"s_cmp_eq_u32 s{sW}, 0", f"s_cbranch_scc0 {name}_pubret",
                f"s_lshl_b32 s56, s{sPair}, 7", f"s_add_u32 s56, s56, {WS_F}", "v_mov_b32 v12, 1", "v_mov_b32 v13, 0",
                "s_mov_b64 s[58:59], exec", "s_mov_b64 exec, 1", "buffer_store_dword v12, v13, s[4:7], s56 offen sc1", "s_mov_b64 exec, s[58:59]",
                f"s_branch {name}_pubret"])

    a.label(f"{name}_fin")
    a(f"s_mul_i32 s56, s{sH}, 229376"); a("s_add_u32 s8, s44, s56"); a("s_addc_u32 s9, s45, 0"); a(f"s_sub_u32 s10, {16*229376}, s56"); a("s_mov_b32 s11, 0x20000")
    a(f"s_mul_i32 s56, s{sH}, 100352"); a("s_add_u32 s12, s46, s56"); a("s_addc_u32 s13, s47, 0"); a(f"s_sub_u32 s14, {1792*896}, s56"); a("s_mov_b32 s15, 0x20000")
    a("s_add_u32 s76, s12, 57344"); a("s_addc_u32 s77, s13, 0"); a("s_sub_u32 s78, s14, 57344"); a("s_mov_b32 s79, 0x20000")
    a(f"s_mul_i32 s48, s{sW}, 7168")
    a(f"s_mul_i32 s57, s{sW}, 448")
    for i in range(7):
        a(f"v_add_u32 v12, s57, v{vLANE}");
        if i: a(f"v_add_u32 v12, {64*i}, v12")
        a("v_mul_u32_u24 v13, 2341, v12"); a("v_lshrrev_b32 v13, 16, v13")
        a("v_mul_u32_u24 v14, 28, v13"); a("v_sub_u32 v14, v12, v14")
        a("v_mul_u32_u24 v13, 896, v13"); a(f"v_lshl_add_u32 v{vD3+i}, v14, 4, v13")
    a(f"v_lshrrev_b32 v12, 5, v{vLANE}"); a("v_lshlrev_b32 v12, 2, v12")
    a(f"v_bfe_u32 v13, v{vLANE}, 2, 2"); a("v_add_u32 v12, v12, v13"); a("v_mul_u32_u24 v12, 448, v12")
    a(f"v_bfe_u32 v13, v{vLANE}, 4, 1"); a("v_lshl_add_u32 v12, v13, 5, v12")
    a(f"v_and_b32 v13, 3, v{vLANE}"); a(f"v_lshl_add_u32 v{vA3}, v13, 3, v12")
    a(f"v_add_u32 v{vA3+1}, 57344, v{vA3}"); a(f"v_add_u32 v{vA3+2}, {2*57344}, v{vA3}")
    a(f"s_lshl_b32 s49, s{sR}, 4"); a(f"s_add_u32 s49, s49, s{sH}"); a("s_lshl_b32 s49, s49, 2"); a(f"s_add_u32 s49, s49, s{sW}")
    a("s_mul_i32 s49, s49, 28672"); a(f"s_add_u32 s49, s49, {WS_P}")
    NS3 = 12; R3 = 5
    def dma3(sg):
        ph, sp = sg // 6, sg % 6
        srd = "s[8:11]" if sp < 4 else ("s[12:15]" if sp == 4 else "s[76:79]")
        so = (sp if sp < 4 else 0) * 57344 + ph * 448
        L = []
        for i in range(7):
            pre = [f"s_add_u32 m0, s48, {(sg % R3) * 28672 + i * 1024}"]
            if i == 0: pre.append(f"s_mov_b32 s52, {so}")
            L.append((pre, VM(("w3", sg), f"buffer_load_dwordx4 v{vD3+i}, {srd}, s52 offen lds")))
        return L
    def p3_prologue():
        L = []
        for sg in range(R3 - 1):
            for pre, ins in dma3(sg): L += pre + ["s_nop 0", ins]
        return L
    a("s_waitcnt vmcnt(0)"); a("s_barrier")
    a(f"s_cmp_eq_u32 s{sTB}, 1"); a(f"s_cbranch_scc1 {name}_own")
    a(f"s_lshl_b32 s56, s{sPair}, 7"); a(f"s_add_u32 s56, s56, {WS_F}"); a("v_mov_b32 v13, 0")
    a("s_mov_b32 s58, 0")
    a.label(f"{name}_poll")
    a("buffer_load_dword v12, v13, s[4:7], s56 offen sc1"); a("s_waitcnt vmcnt(0)")
    a("v_readfirstlane_b32 s57, v12"); a("s_add_u32 s58, s58, 1"); a(f"s_cmp_ge_u32 s58, {opt.get('bound', 1 << 22)}"); a(f"s_cbranch_scc1 {name}_pollend")
    a("s_cmp_eq_u32 s57, 1"); a(f"s_cbranch_scc0 {name}_poll")
    a.label(f"{name}_pollend")
    a(f"v_sub_f32 v{vT0}, 0, v{NEGM}")
    a(f"s_lshl_b32 s56, s{sPair}, 11"); a(f"s_lshl_b32 s57, s{sW}, 9"); a("s_add_u32 s56, s56, s57"); a(f"s_add_u32 s56, s56, {WS_ML}")
    a(f"v_lshlrev_b32 v14, 3, v{vLANE}")
    a("buffer_load_dwordx2 v[12:13], v14, s[4:7], s56 offen sc1")
    a(f"s_lshl_b32 s56, s{sPair}, 17"); a(f"s_lshl_b32 s57, s{sW}, 15"); a("s_add_u32 s56, s56, s57"); a(f"s_add_u32 s56, s56, {WS_OP}")
    for i in range(32):
        if i % 4 == 0 and i: a("s_add_u32 s56, s56, 4096")
        a(f"buffer_load_dwordx4 v[{16+4*i}:{16+4*i+3}], v{vL16}, s[4:7], s56 offen offset:{(i%4)*1024} sc1")
    pro = p3_prologue()
    for x in pro: a(x if isinstance(x, str) else x[2])
    a("s_waitcnt vmcnt(60)")
    a(f"v_max_f32 v{vT1}, v{vT0}, v12")
    a(f"v_sub_f32 v{vT0}, v{vT0}, v{vT1}"); a(f"v_sub_f32 v12, v12, v{vT1}")
    a(f"v_exp_f32 v{vT0}, v{vT0}"); a("v_exp_f32 v12, v12"); a("s_nop 0")
    a(f"v_mul_f32 v{vLS}, v{vLS}, v{vT0}"); a(f"v_fma_f32 v{vLS}, v13, v12, v{vLS}")
    a(f"v_mov_b32 v13, v{vLS}"); a("s_nop 1"); a(f"v_permlane32_swap_b32 v{vLS}, v13"); a("s_nop 1"); a(f"v_add_f32 v{vLS}, v{vLS}, v13")
    a(f"v_rcp_f32 v{vLS}, v{vLS}"); a("s_nop 0"); a(f"v_mul_f32 v{vLS}, v{vLS}, v{vG}")
    a(f"v_mul_f32 v{vT0}, v{vT0}, v{vLS}"); a(f"v_mul_f32 v12, v12, v{vLS}")
    for j0 in range(0, 64, 4):
        if j0 % 8 == 0: a(f"s_waitcnt vmcnt({28 + 32 - (j0 // 2 + 4)})")
        for k in range(4):
            j = j0 + k
            a(f"v_accvgpr_read_b32 v{144+2*k}, a{aO+2*j}"); a(f"v_accvgpr_read_b32 v{145+2*k}, a{aO+2*j+1}")
        for k in range(8): a(f"v_mul_f32 v{144+k}, v{144+k}, v{vT0}")
        for k in range(8): a(f"v_fma_f32 v{144+k}, v{16+2*j0+k}, v12, v{144+k}")
        for k in range(4): a(f"v_cvt_pk_bf16_f32 v{CT+j0+k}, v{144+2*k}, v{145+2*k}")
    a(f"s_branch {name}_p3")
    a.label(f"{name}_own")
    a.ext(pro)
    a(f"v_mov_b32 v13, v{vLS}"); a("s_nop 1"); a(f"v_permlane32_swap_b32 v{vLS}, v13"); a("s_nop 1"); a(f"v_add_f32 v{vLS}, v{vLS}, v13")
    a(f"v_rcp_f32 v{vLS}, v{vLS}"); a("s_nop 0"); a(f"v_mul_f32 v{vLS}, v{vLS}, v{vG}")
    for j0 in range(0, 64, 4):
        for k in range(4):
            j = j0 + k
            a(f"v_accvgpr_read_b32 v{144+2*k}, a{aO+2*j}"); a(f"v_accvgpr_read_b32 v{145+2*k}, a{aO+2*j+1}")
        for k in range(8): a(f"v_mul_f32 v{144+k}, v{144+k}, v{vLS}")
        for k in range(4): a(f"v_cvt_pk_bf16_f32 v{CT+j0+k}, v{144+2*k}, v{145+2*k}")
    a.label(f"{name}_p3")
    if stamp: a("s_memtime s[66:67]")
    items = []
    slot_start = {}
    for sg in range(NS3):
        ph, sp = sg // 6, sg % 6
        nk = 4 if sp < 5 else 3
        slot_start[sg] = len(items)
        for s_ in range(nk):
            B = CT + 4 * (4 * sp + s_) if sp < 4 else HF + 4 * (4 * (sp - 4) + s_)
            for t in range(7):
                items.append((sg, s_, t, B, sp == 0 and s_ == 0))
    NM = len(items)
    def rd3(g):
        sg, s_, t, B, first = items[g]
        ring = sg % R3
        base = vA3 + ring // 2
        off = (ring % 2) * 28672 + s_ * 7168 + t * 64
        b = FR + 4 * (g % 16)
        return [LDS(("f", g), f"ds_read_b64_tr_b16 v[{b}:{b+1}], v{base} offset:{off}"),
                LDS(("f", g), f"ds_read_b64_tr_b16 v[{b+2}:{b+3}], v{base} offset:{off + 3584}")]
    M = []
    for g, (sg, s_, t, B, first) in enumerate(items):
        acc = (sg // 6) * 112 + 16 * t
        M.append(MF(ar(acc, 16), fr(g), vr(B, 4), "0" if first else ar(acc, 16)))
    fill = {}
    D = 8
    for g in range(0, NM, 4):
        put(fill, g - 1, WLDS(("f", min(g + 3, NM - 1))))
    for sg in range(NS3 - 1):
        g0 = slot_start[sg + 1] - D
        put(fill, g0 - 1, WVM(("w3", sg + 1)), "s_barrier")
        if sg + R3 - 1 < NS3:
            for i, (pre, ins) in enumerate(dma3(sg + R3 - 1)):
                put(fill, g0 + 3 * i, *pre); put(fill, g0 + 3 * i + 1, ins)
    for g in range(NM - D): put(fill, g, *rd3(g + D))
    def epi3(ph):
        L = []
        for t in range(7):
            acc = ph * 112 + 16 * t
            tb = 200 + (t % 2) * 16
            for f in range(2):
                for i in range(8): L.append(f"v_accvgpr_read_b32 v{tb+8*f+i}, a{acc+8*f+i}")
                for i in range(4): L.append(f"v_cvt_pk_bf16_f32 v{tb+8*f+i}, v{tb+8*f+2*i}, v{tb+8*f+2*i+1}")
                n = (ph * 7 + t) * 2 + f
                if n % 4 == 0 or (t == 0 and f == 0): L.append(f"s_add_u32 s53, s49, {(n // 4) * 4096}")
                L.append(VM("pst", f"buffer_store_dwordx4 v[{tb+8*f}:{tb+8*f+3}], v{vL16}, s[4:7], s53 offen offset:{(n%4)*1024}"))
        return L
    spread(fill, NM // 2 + 3, NM - 4, epi3(0))
    def order3(fill):
        r = {}
        for k, l in fill.items():
            w = [x for x in l if not isinstance(x, str) and x[0] == "wlds"]
            bar = [x for x in l if (not isinstance(x, str) and x[0] == "wvm") or x == "s_barrier"]
            o = [x for x in l if x not in w and x not in bar]
            r[k] = o + bar + w
        return r
    a.put(WVM(("w3", 0))); a("s_barrier")
    for g in range(D): a.ext(rd3(g))
    a.ext(interleave(M, order3(fill)))
    a("s_nop 7"); a("s_nop 3")
    if stamp: a("s_memtime s[68:69]")
    a.ext(epi3(1))
    if stamp:
        a("s_waitcnt vmcnt(0)")
        a("s_memtime s[70:71]"); a("s_memrealtime s[72:73]"); a("s_waitcnt lgkmcnt(0)")
        a(f"s_cmp_eq_u32 s{sW}, 0"); a(f"s_cbranch_scc0 {name}_done")
        a("s_sub_u32 s64, s64, s60"); a("s_sub_u32 s66, s66, s60"); a("s_sub_u32 s68, s68, s60"); a("s_sub_u32 s70, s70, s60"); a("s_sub_u32 s72, s72, s62")
        a("v_mov_b32 v96, s64"); a("v_mov_b32 v97, s66"); a("v_mov_b32 v98, s68"); a("v_mov_b32 v99, s70")
        a("v_mov_b32 v100, s62"); a("v_mov_b32 v101, s63"); a("v_mov_b32 v102, s72"); a(f"v_mov_b32 v103, s{sR}")
        a("s_lshl_b32 s53, s2, 5"); a(f"s_add_u32 s53, s53, {(128 << 20) + 8192}")
        a("v_mov_b32 v104, 0"); a("s_mov_b64 exec, 1")
        a("buffer_store_dwordx4 v[96:99], v104, s[4:7], s53 offen"); a("buffer_store_dwordx4 v[100:103], v104, s[4:7], s53 offen offset:16")
        a("s_waitcnt vmcnt(0)")
    a.label(f"{name}_done")
    a("s_endpgm")
    for blk in ool: a.ext(blk)
    a(kernel_desc(name, 512, 256))
    return a.text()

def gen_k3(name="k3_kernel", opt=None):
    a = TAsm()
    a(kernel_header(name))
    a("s_cmp_ge_u32 s2, 224"); a(f"s_cbranch_scc1 {name}_done")
    a("s_load_dwordx2 s[42:43], s[0:1], 96"); a("s_load_dwordx2 s[44:45], s[0:1], 80")
    a("v_lshrrev_b32 v2, 6, v0"); a("v_and_b32 v1, 63, v0"); a("s_nop 0"); a("v_readfirstlane_b32 s16, v2")
    a("v_lshlrev_b32 v2, 4, v1")
    a("s_lshl_b32 s17, s2, 2"); a("s_add_u32 s17, s17, s16")
    a("s_mul_i32 s18, s17, 4682"); a("s_lshr_b32 s18, s18, 16")
    a("s_mul_i32 s19, s18, 14"); a("s_sub_u32 s19, s17, s19")
    a("s_lshr_b32 s20, s18, 2"); a("s_and_b32 s21, s18, 3")
    a("s_lshl_b32 s22, s20, 6"); a("s_add_u32 s22, s22, s21"); a("s_mul_i32 s22, s22, 28672"); a("s_lshl_b32 s23, s19, 11"); a("s_add_u32 s22, s22, s23")
    a(f"s_add_u32 s22, s22, {WS_P}")
    a("s_waitcnt lgkmcnt(0)")
    a("s_mov_b32 s4, s42"); a("s_mov_b32 s5, s43"); a("s_mov_b32 s6, 0x10000000"); a("s_mov_b32 s7, 0x20000")
    a("s_mov_b32 s8, s44"); a("s_mov_b32 s9, s45"); a(f"s_mov_b32 s10, {2048*896}"); a("s_mov_b32 s11, 0x20000")
    for h in range(16):
        for f in range(2):
            a.put(VM(("p", h), f"buffer_load_dwordx4 v[{16+8*h+4*f}:{16+8*h+4*f+3}], v2, s[4:7], s22 offen offset:{f*1024}"))
        if h < 15: a(f"s_add_u32 s22, s22, {4*28672}")
    a("v_and_b32 v3, 31, v1"); a("v_mul_u32_u24 v3, 896, v3"); a("v_lshrrev_b32 v4, 5, v1"); a("v_lshl_add_u32 v3, v4, 4, v3")
    a("s_mul_i32 s23, s18, 28672"); a("s_lshl_b32 s24, s19, 6"); a("s_add_u32 s23, s23, s24")
    for h in range(16):
        a.put(WVM(("p", h)))
        for i in range(8):
            src = 16 + 8 * h + i
            if h == 0:
                a(f"v_lshlrev_b32 v{160+2*i}, 16, v{src}"); a(f"v_and_b32 v{161+2*i}, 0xffff0000, v{src}")
            else:
                a(f"v_lshlrev_b32 v4, 16, v{src}"); a(f"v_and_b32 v5, 0xffff0000, v{src}")
                a(f"v_add_f32 v{160+2*i}, v{160+2*i}, v4"); a(f"v_add_f32 v{161+2*i}, v{161+2*i}, v5")
    for i in range(8): a(f"v_cvt_pk_bf16_f32 v{8+i}, v{160+2*i}, v{161+2*i}")
    a("s_nop 1")
    for f in range(2):
        b = 8 + 4 * f
        a(f"v_permlane32_swap_b32 v{b}, v{b+2}"); a(f"v_permlane32_swap_b32 v{b+1}, v{b+3}")
    a("s_nop 1")
    for f in range(2):
        b = 8 + 4 * f
        a(f"buffer_store_dwordx4 v[{b}:{b+3}], v3, s[8:11], s23 offen offset:{f*32}")
    a.label(f"{name}_done")
    a("s_endpgm")
    a(kernel_desc(name, 192, 192))
    return a.text()

K2_LAUNCH = f"; @launch kernel=k2_kernel grid=(256,1,1) block=(256,1,1) lds={LDS2}"
K3_LAUNCH = "; @launch kernel=k3_kernel grid=(224,1,1) block=(256,1,1) lds=0"
```

```python
import sys, json
import gen1b as gen1, gen2
def build(fn, o1=None, o2=None, o3=None):
    ref = open("gated_mix__compressed_kv_cla__dense_activation_relu__prompt.s.ref").read().split("\n")
    hdr = [l for l in ref if l.startswith(";") and not l.startswith("; @launch") and ("offset" in l or "Kernarg" in l)]
    txt = "\n".join(hdr) + "\n" + gen1.K1_LAUNCH + "\n" + gen2.K2_LAUNCH + "\n" + gen2.K3_LAUNCH + "\n"
    txt += ".amdgcn_target \"amdgcn-amd-amdhsa--gfx950\"\n.text\n"
    txt += gen1.gen_k1("k1_kernel", o1) + gen2.gen_k2("k2_kernel", o2) + gen2.gen_k3("k3_kernel", o3)
    open(fn, "w").write(txt)
if __name__ == "__main__":
    o = json.loads(sys.argv[2]) if len(sys.argv) > 2 else {}
    build(sys.argv[1], o.get("k1"), o.get("k2"), o.get("k3"))
```

```python
class Asm:
    def __init__(self):
        self.l = []
    def __call__(self, s=""):
        for x in s.split("\n"):
            x = x.strip()
            if x: self.l.append(x)
    def label(self, n): self.l.append(n + ":")
    def c(self, s): self.l.append("; " + s)
    def ext(self, lst):
        for x in lst: self(x)
    def text(self): return "\n".join(self.l) + "\n"

def vr(b, n=1):
    return f"v{b}" if n == 1 else f"v[{b}:{b+n-1}]"
def ar(b, n=1):
    return f"a{b}" if n == 1 else f"a[{b}:{b+n-1}]"
def sr(b, n=1):
    return f"s{b}" if n == 1 else f"s[{b}:{b+n-1}]"

def interleave(backbone, fillers):
    out = []
    out += fillers.get(-1, [])
    for i, b in enumerate(backbone):
        out.append(b)
        out += fillers.get(i, [])
    return out

def kernel_header(name):
    return f""".globl {name}
.p2align 8
.type {name},@function
{name}:"""

def kernel_desc(name, vgpr, accum, sgpr=102, lds=0):
    return f""".section .rodata,"a"
.p2align 6
.amdhsa_kernel {name}
  .amdhsa_next_free_vgpr {vgpr}
  .amdhsa_next_free_sgpr {sgpr}
  .amdhsa_accum_offset {accum}
  .amdhsa_group_segment_fixed_size 0
  .amdhsa_kernarg_size 104
  .amdhsa_user_sgpr_count 2
  .amdhsa_user_sgpr_kernarg_segment_ptr 1
  .amdhsa_system_sgpr_workgroup_id_x 1
  .amdhsa_float_denorm_mode_32 3
.end_amdhsa_kernel
.text"""

class Tracker:
    def __init__(self, name, maxc):
        self.name = name; self.maxc = maxc; self.ops = []
    def issue(self, tag, n=1):
        self.ops += [tag] * n
    def count(self, tag):
        idx = [i for i, t in enumerate(self.ops) if t == tag]
        if not idx: return None
        return len(self.ops) - 1 - idx[-1]
    def wait(self, tag):
        n = self.count(tag)
        assert n is not None, ("no such tag", tag)
        return f"s_waitcnt {self.name}({min(n, self.maxc)})"
    def reset(self): self.ops = []

def spread(fill, start, end, instrs):
    n = len(instrs); g = end - start
    for i, ins in enumerate(instrs):
        pos = start + (i * g) // n
        fill.setdefault(pos, []).append(ins)

def VM(tag, s): return ("vm", tag, s)
def LDS(tag, s): return ("lds", tag, s)
def WVM(tag): return ("wvm", tag)
def WLDS(tag): return ("wlds", tag)

class TAsm(Asm):
    def __init__(self):
        super().__init__()
        self.vm = Tracker("vmcnt", 63); self.lds = Tracker("lgkmcnt", 15)
    def put(self, x):
        if isinstance(x, str): self(x)
        elif x[0] == "vm": self.vm.issue(x[1]); self(x[2])
        elif x[0] == "lds": self.lds.issue(x[1]); self(x[2])
        elif x[0] == "wvm": self(self.vm.wait(x[1]))
        elif x[0] == "wlds": self(self.lds.wait(x[1]))
        else: raise ValueError(x)
    def ext(self, lst):
        for x in lst: self.put(x)


def _cost(x):
    if not isinstance(x, str):
        if x[0] in ("wvm", "wlds"): return 0.0
        x = x[2]
    if x.endswith(":"): return 0.0
    if x.startswith("s_waitcnt") or x.startswith("s_nop"): return 0.0
    if x.startswith("s_barrier"): return 1.0
    return 1.0
def loads(fill, start, end):
    return [sum(_cost(x) for x in fill.get(g, [])) for g in range(start, end)]
def pour(fill, start, end, instrs):
    n = len(instrs)
    if n == 0: return
    ld = loads(fill, start, end)
    lo, hi = 0.0, max(ld) + n + 1.0
    for _ in range(50):
        mid = (lo + hi) / 2
        if sum(max(0.0, mid - l) for l in ld) >= n: hi = mid
        else: lo = mid
    L = hi
    cum = 0.0; i = 0
    for k, g in enumerate(range(start, end)):
        cum += max(0.0, L - ld[k])
        while i < n and i + 0.5 <= cum + 1e-6:
            fill.setdefault(g, []).append(instrs[i]); i += 1
    while i < n:
        fill.setdefault(end - 1, []).append(instrs[i]); i += 1
def show_load(fill, start, end):
    return " ".join(str(int(x)) for x in loads(fill, start, end))
```

```python
from asmlib import *

WS_K = 0
WS_V = 16 << 20
WS_Q = 32 << 20
WS_H = 48 << 20
WS_G = 56 << 20
WS_F = 57 << 20
WS_OP = 64 << 20
WS_ML = 80 << 20
WS_P = 96 << 20
QSCALE = 1.4426950408889634 / 16.0
import struct
def f2u(x): return struct.unpack("<I", struct.pack("<f", x))[0]

GATE = 9 * 16384
LDS1 = GATE + 1024
def gen_k1(name="k1_kernel", opt=None):
    opt = opt or {}
    stamp = opt.get("stamp", False)
    dma_stride = opt.get("dma_stride", 2)
    store_flags = opt.get("store_flags", "")
    warm = opt.get("warm", 1)
    lead = opt.get("lead", 3)
    a = TAsm()
    a(kernel_header(name))
    a("s_cmp_ge_u32 s2, 256")
    a(f"s_cbranch_scc1 {name}_done")
    if stamp:
        a("s_memtime s[60:61]")
        a("s_memrealtime s[62:63]")
    a("s_load_dwordx4 s[36:39], s[0:1], 0")
    a("s_load_dwordx4 s[44:47], s[0:1], 24")
    a("s_load_dwordx2 s[42:43], s[0:1], 96")
    a("s_load_dwordx2 s[48:49], s[0:1], 16")
    a("s_load_dwordx2 s[74:75], s[0:1], 56")
    a("s_load_dwordx2 s[76:77], s[0:1], 72")
    a("s_and_b32 s50, s2, 7")
    a("s_lshr_b32 s51, s2, 3")
    a("s_lshr_b32 s52, s51, 3")
    a("s_lshl_b32 s53, s50, 2")
    a("s_add_u32 s52, s52, s53")
    a("s_lshr_b32 s53, s52, 1")
    a("s_and_b32 s54, s52, 1")
    a("s_and_b32 s55, s51, 7")
    a("s_lshr_b32 s78, s51, 4")
    a("s_lshl_b32 s79, s50, 1")
    a("s_add_u32 s78, s78, s79")
    a("s_and_b32 s79, s51, 15")
    a("v_lshrrev_b32 v5, 6, v0")
    a("v_and_b32 v6, 63, v0")
    a("s_nop 0")
    a("v_readfirstlane_b32 s56, v5")
    a("s_nop 3")
    a("s_lshr_b32 s57, s56, 1")
    a("s_and_b32 s58, s56, 1")
    a("s_lshl_b32 s80, s79, 2")
    a("s_add_u32 s80, s80, s56")
    a("v_lshrrev_b32 v7, 3, v6")
    a("v_lshlrev_b32 v24, 11, v7")
    a("v_and_b32 v25, 7, v6")
    a("v_lshrrev_b32 v26, 4, v6")
    a("v_xor_b32 v27, v25, v26")
    a("v_lshl_add_u32 v1, v27, 4, v24")
    a("v_xor_b32 v27, 4, v27")
    a("v_lshl_add_u32 v2, v27, 4, v24")
    a("v_lshrrev_b32 v7, 5, v6")
    a("v_lshlrev_b32 v24, 13, v7")
    a("v_and_b32 v25, 31, v6")
    a("v_lshlrev_b32 v26, 2, v7")
    a("v_xor_b32 v27, v25, v26")
    a("v_lshl_add_u32 v3, v27, 4, v24")
    a("v_xor_b32 v27, 8, v27")
    a("v_lshl_add_u32 v4, v27, 4, v24")
    a("v_lshrrev_b32 v28, 3, v6"); a("v_mul_u32_u24 v28, 896, v28")
    a("v_and_b32 v29, 7, v6"); a("v_lshrrev_b32 v30, 4, v6"); a("v_xor_b32 v29, v29, v30")
    a("v_lshl_add_u32 v240, v29, 4, v28"); a("v_xor_b32 v29, 4, v29"); a("v_lshl_add_u32 v241, v29, 4, v28")
    a("s_lshl_b32 s100, s56, 12")
    a("v_and_b32 v24, 31, v6")
    a("s_lshl_b32 s59, s57, 14")
    a("v_lshlrev_b32 v25, 7, v24")
    a("v_add_u32 v25, s59, v25")
    a("v_lshrrev_b32 v26, 1, v24")
    a("v_and_b32 v26, 7, v26")
    a("v_lshrrev_b32 v27, 5, v6")
    for s in range(4):
        a(f"v_add_u32 v28, {2*s}, v27")
        a("v_xor_b32 v28, v28, v26")
        a(f"v_lshl_add_u32 v{8+s}, v28, 4, v25")
        a(f"v_add_u32 v{12+s}, 0x10000, v{8+s}")
        a(f"v_subrev_u32 v{242+s}, s59, v{8+s}"); a(f"v_add_u32 v{242+s}, s100, v{242+s}")
    a("v_lshrrev_b32 v24, 4, v6")
    a("v_and_b32 v25, 15, v6")
    a("v_lshrrev_b32 v26, 2, v25")
    a("v_and_b32 v27, 3, v25")
    a("v_lshrrev_b32 v28, 1, v24")
    a("v_lshl_add_u32 v28, v28, 3, v26")
    a("v_lshlrev_b32 v254, 8, v28")
    a("v_lshlrev_b32 v28, 9, v28")
    a("v_add_u32 v28, 0x8000, v28")
    a("v_and_b32 v29, 1, v24")
    a("v_lshlrev_b32 v29, 1, v29")
    a("v_lshrrev_b32 v30, 1, v27")
    a("v_add_u32 v29, v29, v30")
    a("v_lshl_add_u32 v254, v29, 4, v254")
    a("s_lshl_b32 s59, s58, 4")
    a("v_add_u32 v29, s59, v29")
    a("v_lshl_add_u32 v28, v29, 4, v28")
    a("v_and_b32 v30, 1, v27")
    a("v_lshl_add_u32 v28, v30, 3, v28")
    a("v_lshl_add_u32 v254, v30, 3, v254")
    for dt in range(4):
        a(f"v_xor_b32 v29, {dt}, v26")
        a(f"v_lshl_add_u32 v{16+dt}, v29, 6, v28")
        a(f"v_add_u32 v{20+dt}, 0x10000, v{16+dt}")
        a(f"v_lshl_add_u32 v{250+dt}, v29, 6, v254")
    a("v_lshlrev_b32 v31, 4, v6")
    a("v_lshrrev_b32 v24, 4, v6")
    a("v_and_b32 v25, 15, v6")
    a("v_lshlrev_b32 v26, 2, v24")
    a("v_xor_b32 v25, v25, v26")
    a("v_lshlrev_b32 v25, 4, v25")
    a("v_lshl_add_u32 v246, v24, 13, v25")
    a("v_add_u32 v247, 256, v246")
    a("v_mul_u32_u24 v248, 3584, v24")
    a("v_add_u32 v248, v248, v25")
    a("v_lshrrev_b32 v249, 5, v6")
    a("v_lshlrev_b32 v249, 4, v249")
    a(f"v_add_u32 v249, {GATE}, v249")
    a("s_waitcnt lgkmcnt(0)")
    a("s_mov_b32 s4, s38"); a("s_mov_b32 s5, s39"); a("s_mov_b32 s6, 0x400000"); a("s_mov_b32 s7, 0x20000")
    a("s_cmp_eq_u32 s54, 0")
    a("s_cselect_b32 s8, s44, s46"); a("s_cselect_b32 s9, s45, s47")
    a("s_lshl_b32 s59, s53, 9")
    a("s_add_u32 s8, s8, s59"); a("s_addc_u32 s9, s9, 0")
    a("s_sub_u32 s10, 0x800000, s59"); a("s_mov_b32 s11, 0x20000")
    a("s_lshl_b32 s59, s54, 24")
    a("s_lshl_b32 s33, s53, 20")
    a("s_add_u32 s59, s59, s33")
    a("s_add_u32 s12, s42, s59"); a("s_addc_u32 s13, s43, 0")
    a("s_mov_b32 s14, 0x100000"); a("s_mov_b32 s15, 0x20000")
    a("s_mov_b32 s84, s36"); a("s_mov_b32 s85, s37"); a(f"s_mov_b32 s86, {2048*896}"); a("s_mov_b32 s87, 0x20000")
    a("s_lshl_b32 s59, s78, 9"); a("s_add_u32 s88, s48, s59"); a("s_addc_u32 s89, s49, 0")
    a(f"s_sub_u32 s90, {448*8192}, s59"); a("s_mov_b32 s91, 0x20000")
    a("s_mul_i32 s59, s78, 224"); a("s_and_b32 s33, s78, 1"); a("s_lshl_b32 s33, s33, 5"); a("s_sub_u32 s59, s59, s33")
    a("s_add_u32 s92, s74, s59"); a("s_addc_u32 s93, s75, 0")
    a(f"s_sub_u32 s94, {448*3584}, s59"); a("s_mov_b32 s95, 0x20000")
    a("s_mov_b32 s96, s76"); a("s_mov_b32 s97, s77"); a("s_mov_b32 s98, 896"); a("s_mov_b32 s99, 0x20000")
    a("s_lshl_b32 s59, s55, 19")
    a("s_lshl_b32 s33, s56, 17")
    a("s_add_u32 s59, s59, s33")
    for i in range(8):
        a(f"s_add_u32 s{16+i}, s59, {i*16384 - (i%4)*1024}")
        a(f"s_add_u32 s{24+i}, s33, {i*16384 - (i%4)*1024}")
    a("s_lshl_b32 s32, s56, 13")
    def dma_list(stage):
        L = []
        for reg in range(2):
            for i in range(8):
                pre = []
                if i % 4 == 0:
                    pre = [f"s_add_u32 m0, s32, {stage*65536 + reg*32768 + i*1024}"]
                if reg == 0:
                    ins = f"buffer_load_dwordx4 v{1+(i&1)}, s[4:7], s{16+i} offen offset:{(i%4)*1024} lds"
                else:
                    ins = f"buffer_load_dwordx4 v{3+(i&1)}, s[8:11], s{24+i} offen offset:{(i%4)*1024} lds"
                L.append((pre, ins))
        return L
    adv = ["v_add_u32 v1, 0x80, v1", "v_add_u32 v2, 0x80, v2", "v_add_u32 v3, 0x80000, v3", "v_add_u32 v4, 0x80000, v4"]
    for st in range(2):
        for pre, ins in dma_list(st):
            for p in pre: a(p); a("s_nop 0")
            a(ins)
        a.ext(adv)
    a("s_mul_i32 s81, s80, 28672")
    NWARM = 0
    if warm:
        a("s_lshl_b32 s40, s55, 2"); a("s_add_u32 s40, s40, s56"); a("s_lshl_b32 s40, s40, 14")
        a("v_lshrrev_b32 v96, 5, v6"); a("v_lshlrev_b32 v96, 13, v96"); a("v_and_b32 v97, 31, v6"); a("v_lshl_add_u32 v96, v97, 4, v96")
        a("v_add_u32 v255, s40, v96"); a(f"v_add_u32 v255, {2 * 524288}, v255")
        a("s_lshl_b32 s40, s2, 2"); a("s_add_u32 s40, s40, s56"); a("s_lshl_b32 s40, s40, 10"); a("v_add_u32 v96, s40, v31")
        def wl(v, srd):
            a(f"buffer_load_dwordx4 v[24:27], v{v}, {srd}, 0 offen")
        a("v_mov_b32 v97, v96")
        for st in range(4):
            wl(97, "s[4:7]"); a("v_add_u32 v97, 0x100000, v97"); NWARM += 1
        for st in range(lead):
            wl(255, "s[8:11]"); a("v_add_u32 v255, 0x80000, v255"); NWARM += 1
        if warm >= 1:
            a("v_mov_b32 v97, v96")
            for st in range(2):
                wl(97, "s[84:87]"); a("v_add_u32 v97, 0x100000, v97"); NWARM += 1
            a("s_lshl_b32 s40, s78, 9"); a("v_subrev_u32 v97, s40, v96")
            for st in range(4):
                wl(97, "s[88:91]"); a("v_add_u32 v97, 0x100000, v97"); NWARM += 1
            a("s_mul_i32 s40, s78, 224"); a("s_and_b32 s41, s78, 1"); a("s_lshl_b32 s41, s41, 5"); a("s_sub_u32 s40, s40, s41"); a("v_subrev_u32 v97, s40, v96")
            for st in range(2):
                wl(97, "s[92:95]"); a("v_add_u32 v97, 0x100000, v97"); NWARM += 1
    def frag_reads(stage, s, fs):
        b = 32 + 32*fs
        C = [f"ds_read_b128 v[{b+4*kt}:{b+4*kt+3}], v{8+4*stage+s} offset:{kt*4096}" for kt in range(4)]
        W = []
        for dt in range(4):
            for r in range(2):
                W.append(f"ds_read_b64_tr_b16 v[{b+16+4*dt+2*r}:{b+16+4*dt+2*r+1}], v{16+4*stage+dt} offset:{s*8192+r*2048}")
        return [C[0], W[0], W[1], C[1], C[2], C[3]] + W[2:]
    def mfmas(fs, which, first=False):
        b = 32 + 32*fs
        M = []
        for dt in range(4):
            for kt in range(4):
                acc = (dt*4+kt)*16
                c = f"v[{b+4*kt}:{b+4*kt+3}]"; w = f"v[{b+16+4*dt}:{b+16+4*dt+3}]"
                A, B = (w, c) if which == 0 else (c, w)
                cin = "0" if first else f"a[{acc}:{acc+15}]"
                M.append(f"v_mfma_f32_32x32x16_bf16 a[{acc}:{acc+15}], {A}, {B}, {cin}")
        return M
    a(f"s_waitcnt vmcnt({16 + NWARM})")
    a("s_barrier")
    a.ext(frag_reads(0, 0, 0))
    a("s_cmp_eq_u32 s54, 0")
    a(f"s_cbranch_scc0 {name}_vpath")
    def sub(stage, s, which, nxt, first=False):
        fs = s & 1
        fill = {}
        pre = ["s_waitcnt lgkmcnt(0)"]
        M = mfmas(fs, which, first)
        off = 0
        if s == 3 and nxt is not None:
            fill.setdefault(0, []).extend([f"s_waitcnt vmcnt({1 if warm else 0})", "s_barrier"])
            off = 1
        if nxt is not None:
            R = frag_reads(nxt[0], nxt[1], fs ^ 1)
            for i, r in enumerate(R): fill.setdefault(i+off, []).append(r)
        return (pre, M, fill)
    def emit(subs):
        for pre, M, fill in subs:
            a.ext(pre)
            a.ext(interleave(M, fill))
    def rot(stage, which, dma):
        subs = [sub(stage, 3, which, (stage ^ 1, 0))]
        for s in range(3): subs.append(sub(stage ^ 1, s, which, (stage ^ 1, s+1)))
        if dma:
            D = dma_list(stage)
            pos = 1
            for (pre, ins) in D:
                pp = pos - 1
                if pre: subs[pp//16][2].setdefault(pp%16, []).extend(pre)
                subs[pos//16][2].setdefault(pos%16, []).append(ins)
                pos += dma_stride
            assert pos <= 64
            pos = min(pos, 63)
            subs[pos//16][2].setdefault(pos%16, []).extend(adv)
            if warm:
                pos = min(pos + 2, 62)
                subs[pos//16][2].setdefault(pos%16, []).append("buffer_load_dwordx4 v[24:27], v255, s[8:11], 0 offen")
                subs[(pos+1)//16][2].setdefault((pos+1)%16, []).append("v_add_u32 v255, 0x80000, v255")
        return subs
    RMAP = [8, 7, 0, 1, 2, 3, 4, 5, 6]
    NSLOT = 21
    def dma_slot(sg):
        ph = sg // 7
        L = [f"s_add_u32 m0, s100, {RMAP[sg % 9] * 16384}"]
        vo = 246 + ph
        for i in range(4):
            if ph < 2: ins = f"buffer_load_dwordx4 v{vo}, s[88:91], s{16+i} offen offset:{i*1024} lds"
            else: ins = f"buffer_load_dwordx4 v{vo}, s[92:95], s{20+i} offen offset:{i*1024} lds"
            L.append(VM(("w", sg), ins))
        L.append(f"v_add_u32 v{vo}, {64*8192 if ph < 2 else 64*3584}, v{vo}")
        return L
    def dma_x(c):
        L = [f"s_add_u32 m0, s100, {c * 16384}"]
        for i in range(4):
            L.append(VM(("x", c), f"buffer_load_dwordx4 v{240+(i&1)}, s[84:87], s{24+i} offen offset:{i*1024} lds"))
        L += ["v_add_u32 v240, 0x80, v240", "v_add_u32 v241, 0x80, v241"]
        return L
    def x_read(ks):
        c, s_ = ks // 4, ks % 4
        return LDS(("x", ks), f"ds_read_b128 v[{128+4*ks}:{128+4*ks+3}], v{242+s_} offset:{(c % 4) * 16384}")
    setup = []
    if warm: setup += ["s_load_dwordx2 s[36:37], s[0:1], 40", "s_load_dwordx2 s[38:39], s[0:1], 64"]
    setup += ["s_lshl_b32 s33, s56, 17", f"s_mul_i32 s59, s56, {16*3584}"]
    for i in range(4):
        setup += [f"s_add_u32 s{16+i}, s33, {4*i*8192 - i*1024}", f"s_add_u32 s{20+i}, s59, {4*i*3584 - i*1024}",
                  f"s_add_u32 s{24+i}, s81, {i*(7168 - 1024)}"]
    def stride_place(subs, pos, L, stride):
        for x in L:
            isdma = not isinstance(x, str)
            p = pos if isdma else pos - 1
            subs[p // 16][2].setdefault(p % 16, []).append(x)
            if isdma: pos += stride
        return pos
    def emit_t(subs):
        for pre, M, fill in subs:
            a.ext(pre); a.ext(interleave(M, fill))
    vm_save = None
    for which in range(2):
        tag = f"{name}_{'k' if which==0 else 'v'}"
        if which == 1: a.label(f"{name}_vpath")
        emit([sub(0, s, which, (0, s+1), first=(s == 0)) for s in range(3)])
        a("s_mov_b32 s33, 7")
        a(".p2align 6")
        a.label(f"{tag}_loop")
        emit(rot(0, which, True) + rot(1, which, True))
        a("s_sub_u32 s33, s33, 1")
        a("s_cmp_lg_u32 s33, 0")
        a(f"s_cbranch_scc1 {tag}_loop")
        a.vm.reset(); a.lds.reset()
        for x in setup: a(x)
        subs = rot(0, which, False)
        pos = 3
        for c in range(4): pos = stride_place(subs, pos, dma_x(c), 2)
        pos = stride_place(subs, pos, dma_slot(0), 2)
        subs[pos // 16][2].setdefault(pos % 16, []).extend([f"s_mov_b32 m0, {GATE}", "s_nop 0", VM("gate", "buffer_load_dwordx4 v31, s[96:99], 0 offen lds")])
        assert pos < 62
        emit_t(subs)
        last = sub(1, 3, which, None)
        f = last[2]
        f.setdefault(0, []).extend(["s_barrier", WVM(("x", 3))])
        for s_ in range(4): f.setdefault(0, []).append(f"v_add_u32 v{12+s_}, 0x10000, v{250+s_}")
        for s_ in range(4): f.setdefault(1, []).append(f"v_add_u32 v{16+s_}, 0x20000, v{250+s_}")
        for ks in range(16): f.setdefault(ks // 2 + 1 if ks < 14 else 8, []).append(x_read(ks))
        D = []
        for x in dma_x(4) + dma_x(5) + dma_x(6) + dma_slot(1):
            D.append(x)
            if isinstance(x, str) and "m0" in x: D.append("s_nop 0")
        pour(f, 1, 16, D)
        emit_t([last])
        if which == 0:
            a(f"s_branch {name}_epi")
            vm_end = list(a.vm.ops); lds_end = list(a.lds.ops)
        else:
            assert vm_end == a.vm.ops and lds_end == a.lds.ops
    a.label(f"{name}_epi")
    if stamp: a("s_memtime s[64:65]")
    for s_ in range(4): a(f"v_add_u32 v{242+s_}, 0x10000, v{242+s_}")
    a("s_lshl_b32 s59, s55, 17"); a("s_lshl_b32 s33, s57, 16"); a("s_add_u32 s59, s59, s33"); a("s_lshl_b32 s33, s58, 13"); a("s_add_u32 s35, s59, s33")
    a(f"s_add_u32 s4, s42, {WS_Q}"); a("s_addc_u32 s5, s43, 0"); a(f"s_mov_b32 s6, {32<<20}"); a("s_mov_b32 s7, 0x20000")
    a("s_lshl_b32 s28, s78, 20"); a("s_lshl_b32 s33, s80, 14"); a("s_add_u32 s28, s28, s33")
    a("s_lshl_b32 s29, s78, 19"); a("s_lshl_b32 s33, s80, 13"); a("s_add_u32 s29, s29, s33"); a(f"s_add_u32 s29, s29, {WS_H-WS_Q}")
    a("s_lshl_b32 s30, s78, 14"); a("s_lshl_b32 s33, s80, 8"); a("s_add_u32 s30, s30, s33"); a(f"s_add_u32 s30, s30, {WS_G-WS_Q}")
    a("s_lshl_b32 s31, s2, 6"); a(f"s_add_u32 s31, s31, {WS_F-WS_Q}")
    a(f"s_mov_b32 s34, 0x{f2u(QSCALE):08x}")
    FR = 32
    NG = 84
    GACC = 128
    def reads(g):
        ph, ks = g // 28, g % 28
        sg = g // 4; k4 = g % 4
        R_ = RMAP[sg % 9]
        base = [250, 12, 16][R_ // 4]
        off0 = (R_ % 4) * 16384 + k4 * 4096
        R = []
        for ft in range(4):
            b = FR + (g % 3) * 16 + ft * 4
            for r in range(2):
                R.append(LDS(("a", g), f"ds_read_b64_tr_b16 v[{b+2*r}:{b+2*r+1}], v{base+ft} offset:{off0 + r*1024}"))
        if ph == 1:
            b = 80 + (g % 3) * 4
            R.append(LDS(("a", g), f"ds_read_b128 v[{b}:{b+3}], v249 offset:{ks*32}"))
        return R
    PACC = [0, 64, 0]
    def mf(g):
        ph, ks = g // 28, g % 28
        M = []
        for ft in range(4):
            b = FR + (g % 3) * 16 + ft * 4
            acc = PACC[ph] + ft * 16
            cin = "0" if ks == 0 else f"a[{acc}:{acc+15}]"
            M.append(f"v_mfma_f32_32x32x16_bf16 a[{acc}:{acc+15}], v[{b}:{b+3}], v[{128+4*ks}:{128+4*ks+3}], {cin}")
        if ph == 1:
            b = 80 + (g % 3) * 4
            cin = "0" if ks == 0 else f"a[{GACC}:{GACC+15}]"
            M.append(f"v_mfma_f32_32x32x16_bf16 a[{GACC}:{GACC+15}], v[{b}:{b+3}], v[{128+4*ks}:{128+4*ks+3}], {cin}")
        return M
    def kv_epi(tiles):
        L = []
        for n in tiles:
            dt, kt = n // 4, n % 4
            acc = n * 16
            for f_ in range(2):
                tb = 96 + ((2 * n + f_) % 2) * 8
                for i in range(8): L.append(f"v_accvgpr_read_b32 v{tb+i}, a{acc+8*f_+i}")
                for i in range(4): L.append(f"v_cvt_pk_bf16_f32 v{tb+i}, v{tb+2*i}, v{tb+2*i+1}")
                L.append(f"s_add_u32 s33, s35, {kt*16384 + (dt*2+f_)*1024}")
                L.append(VM("kvst", f"buffer_store_dwordx4 v[{tb}:{tb+3}], v31, s[12:15], s33 offen {store_flags}"))
        return L
    def q_epi(ph):
        L = []
        for ft in range(4):
            acc = PACC[ph] + ft * 16
            for f_ in range(2):
                tb = 112 + f_ * 8
                for i in range(8): L.append(f"v_accvgpr_read_b32 v{tb+i}, a{acc+8*f_+i}")
                for i in range(8): L.append(f"v_mul_f32 v{tb+i}, s34, v{tb+i}")
                for i in range(4): L.append(f"v_cvt_pk_bf16_f32 v{tb+i}, v{tb+2*i}, v{tb+2*i+1}")
                fr = (ph * 4 + ft) * 2 + f_
                if fr % 4 == 0: L.append(f"s_add_u32 s40, s28, {fr*1024}")
                L.append(VM("qst", f"buffer_store_dwordx4 v[{tb}:{tb+3}], v31, s[4:7], s40 offen offset:{(fr%4)*1024}"))
        return L
    a.put(WLDS(("x", 15))); a.put(WVM(("w", 0)))
    a("s_barrier")
    a.ext(reads(0)); a.ext(reads(1))
    a.ext(kv_epi(range(4)))
    if stamp: a("s_memtime s[66:67]")
    backbone = []; fill = {}; P0 = []
    for g in range(NG):
        P0.append(len(backbone)); backbone += mf(g)
    NMF = len(backbone)
    late = {}
    for g in range(NG):
        p0 = P0[g]
        late.setdefault(p0 - 1, []).append(WLDS(("a", g)))
        sg, k4 = g // 4, g % 4
        if g + 2 < NG:
            R = reads(g + 2)
            for i, r in enumerate(R): fill.setdefault(p0 + min(i // 2, 3), []).append(r)
    fill.setdefault(P0[2], []).insert(0, WVM(("x", 6)))
    for ks in range(16, 28): fill.setdefault(P0[2 + (ks - 16) // 3] + (ks - 16) % 3 + 1, []).append(x_read(ks))
    if warm:
        W_ = ["s_mov_b32 s44, s36", "s_mov_b32 s45, s37", f"s_mov_b32 s46, {16*229376}", "s_mov_b32 s47, 0x20000",
              "s_mov_b32 s48, s38", "s_mov_b32 s49, s39", f"s_mov_b32 s50, {1792*896}", "s_mov_b32 s51, 0x20000",
              "s_lshl_b32 s40, s2, 2", "s_add_u32 s40, s40, s56", "s_lshl_b32 s40, s40, 10", "v_add_u32 v28, s40, v31"]
        for st in range(4): W_ += [VM("warm", "buffer_load_dwordx4 v[24:27], v28, s[44:47], 0 offen"), "v_add_u32 v28, 0x100000, v28"]
        W_ += ["v_add_u32 v28, s40, v31"]
        for st in range(2): W_ += [VM("warm", "buffer_load_dwordx4 v[24:27], v28, s[48:51], 0 offen"), "v_add_u32 v28, 0x100000, v28"]
        pour(fill, P0[8], P0[16], W_)
    D = sum([dma_slot(sg) for sg in range(2, 6)], [])
    pos = 1
    for x in D:
        isdma = not isinstance(x, str)
        fill.setdefault(pos if isdma else pos - 1, []).append(x)
        if isdma: pos += 1
    qpos = pos
    for g in range(NG):
        sg, k4 = g // 4, g % 4
        if k4 == 2 and sg + 1 < NSLOT:
            p0 = P0[g]
            pre = [WVM(("w", sg + 1))]
            if sg == 1: pre = [WLDS(("x", 27))] + pre
            fill.setdefault(p0, [])[0:0] = pre + ["s_barrier"]
            todo = [6, 7, 8, 9] if sg == 1 else ([sg + 8] if sg >= 2 and sg + 8 < NSLOT else [])
            qpos = max(qpos, p0 + 1)
            for t_ in todo:
                for x in dma_slot(t_):
                    isdma = not isinstance(x, str)
                    fill.setdefault(qpos if isdma else qpos - 1, []).append(x)
                    if isdma: qpos += (1 if sg <= 2 else 2)
    E1 = P0[28]; E2 = P0[56]
    gfin = [f"v_accvgpr_read_b32 v92, a{GACC}", "s_nop 0", f"v_mul_f32 v92, 0x{f2u(-1.4426950408889634):08x}, v92", "v_exp_f32 v92, v92", "s_nop 0",
            "v_add_f32 v92, 1.0, v92", "v_rcp_f32 v92, v92", "s_nop 0", "v_sub_f32 v93, 1.0, v92", "v_lshlrev_b32 v94, 2, v6",
            VM("gst", "buffer_store_dword v92, v94, s[4:7], s30 offen")]
    pour(fill, 6, E1 - 4, kv_epi(range(4, 9)))
    def merge(A_, B_):
        mix = []
        na, nb = len(A_), len(B_)
        ia = ib = 0
        while ia < na or ib < nb:
            if ib * na <= ia * nb and ib < nb: mix.append(B_[ib]); ib += 1
            elif ia < na: mix.append(A_[ia]); ia += 1
            else: mix.append(B_[ib]); ib += 1
        return mix
    ksp = opt.get("ksp", 13)
    pour(fill, E1 + 3, E2 - 3, merge(kv_epi(range(9, ksp)), q_epi(0)))
    pour(fill, E2 + 3, E2 + 12, gfin)
    pour(fill, E2 + 12, NMF - 2, merge(kv_epi(range(ksp, 16)), q_epi(1)))
    for k, v_ in late.items(): fill.setdefault(k, []).extend(v_)
    if opt.get("showload"): print("P1b load:", show_load(fill, 0, NMF))
    a.ext(interleave(backbone, fill))
    a("s_nop 7"); a("s_nop 3")
    for ft in range(4):
        acc = PACC[2] + ft * 16
        tb = 96 + (ft % 2) * 16
        for f in range(2):
            for i in range(8): a(f"v_accvgpr_read_b32 v{tb+8*f+i}, a{acc+8*f+i}")
            for i in range(8): a(f"v_max_f32 v{tb+8*f+i}, 0, v{tb+8*f+i}")
            for i in range(8): a(f"v_mul_f32 v{tb+8*f+i}, v93, v{tb+8*f+i}")
            for i in range(4): a(f"v_cvt_pk_bf16_f32 v{tb+8*f+i}, v{tb+8*f+2*i}, v{tb+8*f+2*i+1}")
            fr = ft * 2 + f
            if fr % 4 == 0: a(f"s_add_u32 s33, s29, {fr*1024}")
            a(f"buffer_store_dwordx4 v[{tb+8*f}:{tb+8*f+3}], v31, s[4:7], s33 offen offset:{(fr%4)*1024}")
    a("s_cmp_eq_u32 s56, 0")
    a(f"s_cbranch_scc0 {name}_noflag")
    a("v_mov_b32 v94, 0"); a("v_lshlrev_b32 v95, 2, v6")
    a("v_cmp_gt_u32 vcc, 16, v6")
    a("s_and_saveexec_b64 s[72:73], vcc")
    a("buffer_store_dword v94, v95, s[4:7], s31 offen")
    a("s_mov_b64 exec, s[72:73]")
    a.label(f"{name}_noflag")
    if stamp:
        a("s_memtime s[68:69]")
        a("s_waitcnt vmcnt(0)")
        a("s_memtime s[82:83]")
        a("s_memrealtime s[70:71]")
        a("s_waitcnt lgkmcnt(0)")
        a("s_cmp_eq_u32 s56, 0")
        a(f"s_cbranch_scc0 {name}_done")
        a("s_sub_u32 s64, s64, s60"); a("s_sub_u32 s66, s66, s60"); a("s_sub_u32 s68, s68, s60"); a("s_sub_u32 s82, s82, s60"); a("s_sub_u32 s70, s70, s62")
        a("s_add_u32 s12, s42, 0x8000000"); a("s_addc_u32 s13, s43, 0"); a("s_mov_b32 s14, 0x10000")
        a("v_mov_b32 v96, s64"); a("v_mov_b32 v97, s66"); a("v_mov_b32 v98, s68"); a("v_mov_b32 v99, s82")
        a("v_mov_b32 v100, s62"); a("v_mov_b32 v101, s63"); a("v_mov_b32 v102, s70"); a("v_mov_b32 v103, s61")
        a("s_lshl_b32 s33, s2, 5")
        a("v_mov_b32 v104, 0")
        a("v_cmp_eq_u32 vcc, 0, v6")
        a("s_and_saveexec_b64 s[72:73], vcc")
        a("buffer_store_dwordx4 v[96:99], v104, s[12:15], s33 offen")
        a("buffer_store_dwordx4 v[100:103], v104, s[12:15], s33 offen offset:16")
        a("s_waitcnt vmcnt(0)")
    a.label(f"{name}_done")
    a("s_endpgm")
    a(kernel_desc(name, 512, 256))
    return a.text()

K1_LAUNCH = "; @launch kernel=k1_kernel grid=(256,1,1) block=(256,1,1) lds=%d" % LDS1
if __name__ == "__main__":
    import sys, json
    opt = json.loads(sys.argv[2]) if len(sys.argv) > 2 else {}
    hdr = K1_LAUNCH + "\n.amdgcn_target \"amdgcn-amd-amdhsa--gfx950\"\n.text\n"
    open(sys.argv[1], "w").write(hdr + gen_k1("k1_kernel", opt))
```

```python
from asmlib import *
from gen1 import WS_K, WS_V, WS_Q, WS_H, WS_G, WS_F, WS_OP, WS_ML, WS_P, f2u

vLANE, vL16, vK, vV, vQL, vLS, vT, vNINF, vT0, vT1, vG = 1, 2, 3, 4, 5, 6, 7, 8, 9, 10, 11
vT2 = 15
S0, S1, NEGM, P0, P1, PT, FR = 16, 32, 48, 64, 72, 80, 96
HF = 160
vD3 = 188
vA3 = 195
CT = 16
aO, aQ, aQ2 = 0, 128, 192
sH, sR, sW, sTB = 16, 17, 18, 19
sKg, sVg, sKwrap, sKrst, sVwrap, sVrst = 20, 21, 22, 23, 24, 25
sKl, sVl, sKr, sVr = 26, 27, 28, 29
sCnt, sJs, sLw, sTmp = 30, 31, 32, 33
sOnes, sThr, sSeg2, sPub = 34, 35, 36, 37
sN, sT2, sT3, sPair = 38, 39, 40, 41
KRING = 0; VRING = 65536; NV = 5
LDS2 = 147456

def MF(d, A, B, c): return f"v_mfma_f32_32x32x16_bf16 {d}, {A}, {B}, {c}"
def v(b, n=1): return vr(b, n)
def fr(i): return vr(FR + 4 * (i % 16), 4)

class Ring:
    def __init__(self): self.p = 0

def adv_k():
    return [f"s_add_u32 s{sKr}, s{sKr}, 16384", f"s_and_b32 s{sKr}, s{sKr}, 0xffff", f"v_add_u32 v{vK}, s{sKr}, v{vL16}"]
def adv_v():
    return [f"s_add_u32 s{sVr}, s{sVr}, 16384", f"s_cmp_eq_u32 s{sVr}, {VRING + NV*16384}", f"s_cselect_b32 s{sVr}, {VRING}, s{sVr}", f"v_add_u32 v{vV}, s{sVr}, v{vL16}"]
def dma_k():
    pre = [f"s_mov_b32 m0, s{sKl}"]
    ins = [f"buffer_load_dwordx4 v{vL16}, s[4:7], s{sKg} offen offset:{i*1024} lds" for i in range(4)]
    post = [f"s_add_u32 s{sKg}, s{sKg}, 16384", f"s_cmp_eq_u32 s{sKg}, s{sKwrap}", f"s_cselect_b32 s{sKg}, s{sKrst}, s{sKg}",
            f"s_add_u32 s{sKl}, s{sKl}, 16384", f"s_and_b32 s{sKl}, s{sKl}, 0xffff"]
    return pre, ins, post
def dma_v():
    pre = [f"s_mov_b32 m0, s{sVl}"]
    ins = [f"buffer_load_dwordx4 v{vL16}, s[4:7], s{sVg} offen offset:{i*1024} lds" for i in range(4)]
    post = [f"s_add_u32 s{sVg}, s{sVg}, 16384", f"s_cmp_eq_u32 s{sVg}, s{sVwrap}", f"s_cselect_b32 s{sVg}, s{sVrst}, s{sVg}",
            f"s_add_u32 s{sVl}, s{sVl}, 16384", f"s_cmp_ge_u32 s{sVl}, {VRING + NV*16384}", f"s_cselect_b32 s{sT2}, {NV*16384}, 0", f"s_sub_u32 s{sVl}, s{sVl}, s{sT2}"]
    return pre, ins, post
def put(fill, g, *ins):
    fill.setdefault(g, []).extend(ins)
def place_dma(fill, k=True, vv=True, nm=16):
    if k:
        pre, ins, post = dma_k()
        put(fill, 0, *pre)
        for i in range(4): put(fill, 1 + 2 * i, ins[i])
        put(fill, 7, *post[:3]); put(fill, 10, *post[3:])
    if vv:
        o = 8 if k else 0
        pre, ins, post = dma_v()
        put(fill, o, *pre)
        for i in range(4): put(fill, o + 1 + 2 * i, ins[i])
        put(fill, o + 7, *post[:3]); put(fill, min(o + 9, nm - 1), *post[3:])

def sm_list(Sc, Pc):
    e = [f"v_exp_f32 v{PT+i}, v{Sc+i}" for i in range(16)]
    c = [f"v_cvt_pk_bf16_f32 v{Pc+j}, v{PT+2*j}, v{PT+2*j+1}" for j in range(8)]
    d = []
    for j in range(8):
        if j == 0: d.append([f"v_add_f32 v{vT}, v{PT}, v{PT+1}"])
        elif j == 1: d.append([f"v_add_f32 v{vT2}, v{PT+2}, v{PT+3}"])
        else: d.append([f"v_add_f32 v{vT}, v{vT}, v{PT+2*j}", f"v_add_f32 v{vT2}, v{vT2}, v{PT+2*j+1}"])
    L = [e[0], e[1], e[2], e[3], c[0]] + d[0]
    for j in range(1, 7):
        L += [e[2*j+2], e[2*j+3], c[j]] + d[j]
    L += [c[7]] + d[7] + [f"v_add_f32 v{vT}, v{vT}, v{vT2}"]
    return L

def mask_block(Sc):
    L = [f"s_sub_u32 s{sTmp}, s{sLw}, s{sJs}", f"s_lshl_b32 s{sTmp}, s{sTmp}, 5", f"v_add_u32 v{vT0}, s{sTmp}, v{vQL}"]
    for i in range(16):
        ci = 8 * (i >> 2) + (i & 3)
        L += [f"v_cmp_gt_i32 vcc, {ci}, v{vT0}", f"v_cndmask_b32 v{Sc+i}, v{Sc+i}, v{vNINF}, vcc"]
    return L
def rowmax(Sc):
    L = [f"v_max3_f32 v{vT0}, v{Sc}, v{Sc+1}, v{Sc+2}"]
    for i in range(3, 15, 2): L.append(f"v_max3_f32 v{vT0}, v{vT0}, v{Sc+i}, v{Sc+i+1}")
    L += [f"v_max_f32 v{vT0}, v{vT0}, v{Sc+15}", f"v_mov_b32 v{vT1}, v{vT0}", "s_nop 1", f"v_permlane32_swap_b32 v{vT0}, v{vT1}", "s_nop 1",
          f"v_max_f32 v{vT0}, v{vT0}, v{vT1}"]
    return L

def gen_k2(name="k2_kernel", opt=None):
    opt = opt or {}
    stamp = opt.get("stamp", False)
    a = TAsm()
    ool = []
    a(kernel_header(name))
    a("s_cmp_ge_u32 s2, 256")
    a(f"s_cbranch_scc1 {name}_done")
    if stamp:
        a("s_memtime s[60:61]"); a("s_memrealtime s[62:63]")
    a("s_load_dwordx2 s[42:43], s[0:1], 96")
    a("s_load_dwordx2 s[44:45], s[0:1], 40")
    a("s_load_dwordx2 s[46:47], s[0:1], 64")
    if opt.get("perm"):
        a(f"s_mul_i32 s2, s2, {opt['perm']}"); a("s_and_b32 s2, s2, 255")
    a("s_and_b32 s50, s2, 7"); a("s_lshr_b32 s51, s2, 3")
    a(f"s_lshr_b32 s{sH}, s51, 4"); a("s_lshl_b32 s52, s50, 1"); a(f"s_add_u32 s{sH}, s{sH}, s52")
    a(f"s_and_b32 s{sR}, s51, 15")
    a(f"v_lshrrev_b32 v12, 6, v0"); a(f"v_and_b32 v{vLANE}, 63, v0"); a("s_nop 0")
    a(f"v_readfirstlane_b32 s{sW}, v12")
    a(f"v_lshlrev_b32 v{vL16}, 4, v{vLANE}")
    a(f"v_and_b32 v12, 31, v{vLANE}"); a(f"v_lshrrev_b32 v13, 5, v{vLANE}"); a("v_lshlrev_b32 v13, 2, v13")
    a(f"v_sub_u32 v{vQL}, v12, v13")
    a(f"v_mov_b32 v{vNINF}, 0xff800000")
    a(f"s_mov_b32 s{sOnes}, 0x3f803f80"); a(f"s_mov_b32 s{sThr}, 0x{f2u(2.0**30):08x}")
    a(f"s_cmp_lt_u32 s{sR}, 8"); a(f"s_cselect_b32 s{sTB}, 1, 0")
    a(f"s_sub_u32 s53, 15, s{sR}"); a(f"s_cmp_lt_u32 s{sR}, 8"); a(f"s_cselect_b32 s53, s53, s{sR}")
    a("s_sub_u32 s54, s53, 8")
    a(f"s_lshl_b32 s55, s{sH}, 3"); a(f"s_add_u32 s{sPair}, s55, s54")
    a("s_lshl_b32 s55, s53, 2")
    a(f"s_add_u32 s{sLw}, s55, s{sW}")
    a(f"s_sub_u32 s56, s55, 30")
    a(f"s_cmp_eq_u32 s{sTB}, 1")
    a(f"s_cselect_b32 s{sN}, s56, 34"); a(f"s_cselect_b32 s{sJs}, 34, 0")
    a(f"s_lshl_b32 s56, s{sH}, 20"); a(f"s_lshl_b32 s57, s{sW}, 12"); a(f"s_add_u32 s{sKrst}, s56, s57")
    a(f"s_add_u32 s{sVrst}, s{sKrst}, {WS_V}")
    a(f"s_lshl_b32 s56, s{sJs}, 14"); a(f"s_add_u32 s{sKg}, s{sKrst}, s56"); a(f"s_add_u32 s{sVg}, s{sVrst}, s56")
    a("s_add_u32 s56, s55, 4"); a("s_lshl_b32 s56, s56, 14")
    a(f"s_add_u32 s{sKwrap}, s{sKrst}, s56"); a(f"s_add_u32 s{sVwrap}, s{sVrst}, s56")
    a(f"s_cmp_eq_u32 s{sTB}, 1")
    a(f"s_cselect_b32 s{sKwrap}, s{sKwrap}, -1"); a(f"s_cselect_b32 s{sVwrap}, s{sVwrap}, -1")
    a(f"s_mov_b32 s{sKl}, s57"); a(f"s_add_u32 s{sVl}, s57, {VRING}")
    a(f"s_mov_b32 s{sKr}, 0"); a(f"s_mov_b32 s{sVr}, {VRING}")
    a(f"v_mov_b32 v{vK}, v{vL16}"); a(f"v_add_u32 v{vV}, {VRING}, v{vL16}")
    a(f"s_mov_b32 s{sSeg2}, 0"); a(f"s_mov_b32 s{sPub}, 0")
    a("s_waitcnt lgkmcnt(0)")
    a("s_mov_b32 s4, s42"); a("s_mov_b32 s5, s43"); a("s_mov_b32 s6, 0x10000000"); a("s_mov_b32 s7, 0x20000")
    a(f"s_lshl_b32 s56, s{sH}, 20"); a("s_lshl_b32 s57, s53, 2"); a(f"s_add_u32 s57, s57, s{sW}"); a("s_lshl_b32 s57, s57, 14")
    a("s_add_u32 s56, s56, s57"); a(f"s_add_u32 s56, s56, {WS_Q}")
    for i in range(16):
        if i % 4 == 0 and i: a("s_add_u32 s56, s56, 4096")
        a(f"buffer_load_dwordx4 a[{aQ+4*i}:{aQ+4*i+3}], v{vL16}, s[4:7], s56 offen offset:{(i%4)*1024}")
    a(f"s_lshl_b32 s58, s{sR}, 2"); a(f"s_add_u32 s58, s58, s{sW}")
    def full_k():
        pre, ins, post = dma_k(); return pre + ["s_nop 0"] + ins + post
    def full_v():
        pre, ins, post = dma_v(); return pre + ["s_nop 0"] + ins + post
    for f in (full_k, full_k, full_k, full_v, full_k, full_v, full_v): a.ext(f())
    a(f"s_and_b32 s56, s{sH}, 1"); a("s_lshl_b32 s56, s56, 10")
    a(f"s_lshl_b32 s57, s{sH}, 19"); a("s_add_u32 s56, s56, s57"); a("s_lshl_b32 s57, s58, 13"); a("s_add_u32 s56, s56, s57"); a(f"s_add_u32 s56, s56, {WS_H}")
    for i in range(7):
        if i == 4: a("s_add_u32 s56, s56, 4096")
        a(f"buffer_load_dwordx4 v[{HF+4*i}:{HF+4*i+3}], v{vL16}, s[4:7], s56 offen offset:{(i%4)*1024}")
    a(f"s_lshl_b32 s56, s{sH}, 14"); a("s_lshl_b32 s57, s58, 8"); a("s_add_u32 s56, s56, s57"); a(f"s_add_u32 s56, s56, {WS_G}")
    a(f"v_lshlrev_b32 v12, 2, v{vLANE}")
    a(f"buffer_load_dword v{vG}, v12, s[4:7], s56 offen")
    a(f"s_cmp_eq_u32 s{sTB}, 1"); a(f"s_cbranch_scc0 {name}_noq2")
    a(f"s_lshl_b32 s56, s{sH}, 20"); a("s_lshl_b32 s57, s58, 14"); a("s_add_u32 s56, s56, s57"); a(f"s_add_u32 s56, s56, {WS_Q}")
    for i in range(16):
        if i % 4 == 0 and i: a("s_add_u32 s56, s56, 4096")
        a(f"buffer_load_dwordx4 a[{aQ2+4*i}:{aQ2+4*i+3}], v{vL16}, s[4:7], s56 offen offset:{(i%4)*1024}")
    a("s_waitcnt vmcnt(48)"); a(f"s_branch {name}_st")
    a.label(f"{name}_noq2")
    a("s_waitcnt vmcnt(32)")
    a.label(f"{name}_st")
    a("s_barrier")
    def wait3(tag, na, nb, n2):
        a(f"s_cmp_eq_u32 s{sSeg2}, 0"); a(f"s_cbranch_scc0 {name}_{tag}_2")
        a(f"s_cmp_eq_u32 s{sTB}, 0"); a(f"s_cbranch_scc0 {name}_{tag}_b")
        a(f"s_waitcnt vmcnt({na})"); a(f"s_branch {name}_{tag}_e")
        a.label(f"{name}_{tag}_b")
        a(f"s_waitcnt vmcnt({nb})"); a(f"s_branch {name}_{tag}_e")
        a.label(f"{name}_{tag}_2")
        if n2 is not None: a(f"s_waitcnt vmcnt({n2})")
        a.label(f"{name}_{tag}_e")
    a.label(f"{name}_seg")
    a(f"v_mov_b32 v{vLS}, 0")
    def kread(i, ring): return f"ds_read_b128 {fr(ring)}, v{vK} offset:{i*1024}"
    def vread(m, ring):
        f, dt = m // 8, m % 8
        return f"ds_read_b128 {fr(ring)}, v{vV} offset:{(dt*2+f)*1024}"
    def qk(Sn, i, ring, first_zero=False):
        c = ("0" if first_zero else v(NEGM, 16)) if i == 0 else v(Sn, 16)
        return MF(v(Sn, 16), fr(ring), ar(aQ + 4*i, 4), c)
    def pv(Pp, m, ring):
        f, dt = m // 8, m % 8
        return MF(ar(aO + 16*dt, 16), fr(ring), v(Pp + 4*f, 4), ar(aO + 16*dt, 16))
    def waits(fill, n, last_pref):
        for g in range(0, n, 4):
            out = min(4, last_pref - (g + 3))
            put(fill, g - 1, f"s_waitcnt lgkmcnt({max(out,0)})")
    def order(fill):
        r = {}
        for k, l in fill.items():
            w = [x for x in l if x.startswith("s_waitcnt lgkmcnt")]
            r[k] = [x for x in l if not x.startswith("s_waitcnt lgkmcnt")] + w
        return r
    fill = {}
    put(fill, -1, *[kread(i, i) for i in range(8)])
    for g in range(8): put(fill, g, kread(g + 8, g + 8))
    put(fill, 8, *adv_k())
    waits(fill, 16, 15)
    z = [f"v_accvgpr_write_b32 a{aO+i}, 0" for i in range(128)]
    spread(fill, 0, 16, z[:64])
    a.ext(interleave([qk(S0, i, i, True) for i in range(16)], order(fill)))
    wait3("q0", 28, 44, None)
    a("s_barrier")
    a.ext([kread(i, i) for i in range(8)])
    a("s_nop 7"); a("s_nop 3")
    a(f"s_cmp_ge_u32 s{sJs}, s{sLw}"); a(f"s_cbranch_scc0 {name}_f_nomask")
    a.ext(mask_block(S0))
    a.label(f"{name}_f_nomask")
    a.ext(rowmax(S0))
    a(f"v_max_f32 v{vT0}, 0x{f2u(-1e30):08x}, v{vT0}")
    for i in range(16): a(f"v_sub_f32 v{S0+i}, v{S0+i}, v{vT0}")
    a(f"v_sub_f32 v{vT1}, 0, v{vT0}")
    for i in range(16): a(f"v_mov_b32 v{NEGM+i}, v{vT1}")
    a("s_nop 1")
    fill = {}
    for g in range(8): put(fill, g, kread(g + 8, g + 8))
    put(fill, 8, *adv_k())
    waits(fill, 16, 15)
    place_dma(fill, k=True, vv=False)
    spread(fill, 0, 16, sm_list(S0, P0))
    spread(fill, 0, 16, z[64:])
    a.ext(interleave([qk(S1, i, i) for i in range(16)], order(fill)))
    a("s_nop 2")
    a(f"v_add_f32 v{vLS}, v{vLS}, v{vT}")
    a(f"s_add_u32 s{sJs}, s{sJs}, 1")
    wait3("ha", 24, 40, 49)
    a("s_barrier")
    a(f"s_sub_u32 s{sCnt}, s{sN}, 2"); a(f"s_lshr_b32 s{sCnt}, s{sCnt}, 1")
    a(f"s_cmp_eq_u32 s{sCnt}, 0"); a(f"s_cbranch_scc1 {name}_hb")
    LD = opt.get("ld", 8)
    a.ext([kread(i, i) for i in range(LD)])
    def step(par, rb, site):
        Sn, Sc, Pc, Pp = (S0, S1, P1, P0) if par else (S1, S0, P0, P1)
        M = [qk(Sn, i, rb + i) for i in range(16)] + [pv(Pp, m, rb + 16 + m) for m in range(16)]
        fill = {}
        D = LD
        if not opt.get("nobr"):
            put(fill, -1, f"s_cmp_ge_u32 s{sJs}, s{sLw}", f"s_cbranch_scc1 {name}_mask{site}", f"{name}_maskret{site}:")
            ool.append([f"{name}_mask{site}:"] + mask_block(Sc) + [f"s_branch {name}_maskret{site}"])
        for g in range(32):
            j = g + D
            if j < 16: put(fill, g, kread(j, rb + j))
            elif j < 32: put(fill, g, vread(j - 16, rb + j))
            else: put(fill, g, kread(j - 32, rb + j))
        put(fill, 16 - D, *adv_k())
        bg = 31 - D
        if not opt.get("nobar"): put(fill, bg, "s_waitcnt vmcnt(16)", "s_barrier")
        if par == 0:
            put(fill, bg + 1, f"s_cmp_eq_u32 s{sPub}, 1", f"s_cbranch_scc1 {name}_pub", f"{name}_pubret:")
        put(fill, bg + 2, *adv_v())
        for g in range(0, 32, 4): put(fill, g - 1, f"s_waitcnt lgkmcnt({D-4})")
        if not opt.get("nodma"): place_dma(fill, True, True, 32)
        sm = sm_list(Sc, Pc)
        if not opt.get("nosm"): spread(fill, 0, 29, sm)
        put(fill, 30, f"s_add_u32 s{sJs}, s{sJs}, 1")
        if not opt.get("nobr"):
            put(fill, 31, f"v_cmp_nge_f32 vcc, s{sThr}, v{vT}", f"s_cbranch_vccnz {name}_rare{site}", f"{name}_rareret{site}:")
            ool.append([f"{name}_rare{site}:"] + rare_block(Sc, Sn, Pc) + [f"s_branch {name}_rareret{site}"])
        put(fill, 31, f"v_add_f32 v{vLS}, v{vLS}, v{vT}")
        return interleave(M, order2(fill))
    def order2(fill):
        r = {}
        for k, l in fill.items():
            w = [x for x in l if x.startswith("s_waitcnt lgkmcnt")]
            o = [x for x in l if not x.startswith("s_waitcnt lgkmcnt")]
            r[k] = (w + o) if False else (o + w)
        return r
    def rare_block(Sc, Sn, Pc):
        L = ["s_nop 7", "s_nop 7"] + rowmax(Sc) + [f"v_max_f32 v{vT0}, 0, v{vT0}"]
        for i in range(16): L.append(f"v_sub_f32 v{Sc+i}, v{Sc+i}, v{vT0}")
        if Sn is not None:
            for i in range(16): L.append(f"v_sub_f32 v{Sn+i}, v{Sn+i}, v{vT0}")
        for i in range(16): L.append(f"v_sub_f32 v{NEGM+i}, v{NEGM+i}, v{vT0}")
        L += [f"v_sub_f32 v{vT1}, 0, v{vT0}", f"v_exp_f32 v{vT1}, v{vT1}", "s_nop 0", f"v_mul_f32 v{vLS}, v{vLS}, v{vT1}"]
        for i in range(0, 128, 4):
            for k in range(4): L.append(f"v_accvgpr_read_b32 v{12+k}, a{aO+i+k}")
            for k in range(4): L.append(f"v_mul_f32 v{12+k}, v{12+k}, v{vT1}")
            for k in range(4): L.append(f"v_accvgpr_write_b32 a{aO+i+k}, v{12+k}")
        for x in sm_list(Sc, Pc): L += [x, "s_nop 0"]
        L += ["s_nop 3"]
        return L
    if stamp: a("s_memtime s[80:81]")
    a(".p2align 6")
    a.label(f"{name}_loop")
    K2_RING_NOTE = None
    body = step(1, 0, 1) + step(0, 32, 2)
    a.ext(body)
    a(f"s_sub_u32 s{sCnt}, s{sCnt}, 1"); a(f"s_cmp_lg_u32 s{sCnt}, 0"); a(f"s_cbranch_scc1 {name}_loop")
    a.label(f"{name}_hb")
    if stamp: a("s_memtime s[82:83]")
    a("s_nop 7"); a("s_nop 3")
    a.ext([vread(i, i) for i in range(8)])
    a(f"s_cmp_ge_u32 s{sJs}, s{sLw}"); a(f"s_cbranch_scc0 {name}_hb_nomask")
    a.ext(mask_block(S1))
    a.label(f"{name}_hb_nomask")
    fill = {}
    for g in range(8): put(fill, g, vread(g + 8, g + 8))
    put(fill, 8, *adv_v())
    waits(fill, 16, 15)
    place_dma(fill, True, True)
    spread(fill, 0, 16, sm_list(S1, P1))
    a.ext(interleave([pv(P0, m, m) for m in range(16)], order(fill)))
    a("s_nop 2")
    a(f"v_cmp_nge_f32 vcc, s{sThr}, v{vT}"); a(f"s_cbranch_vccnz {name}_rare3"); a.label(f"{name}_rareret3")
    a(f"v_add_f32 v{vLS}, v{vLS}, v{vT}")
    ool.append([f"{name}_rare3:"] + rare_block(S1, None, P1) + [f"s_branch {name}_rareret3"])
    a("s_waitcnt vmcnt(16)"); a("s_barrier")
    fill = {}
    put(fill, -1, *[vread(i, i) for i in range(8)])
    for g in range(8): put(fill, g, vread(g + 8, g + 8))
    put(fill, 8, *adv_v())
    waits(fill, 16, 15)
    place_dma(fill, False, True)
    a.ext(interleave([pv(P1, m, m) for m in range(16)], order(fill)))
    a("s_nop 7"); a("s_nop 7")
    if stamp: a("s_memtime s[64:65]")
    a(f"s_cmp_eq_u32 s{sTB}, 0"); a(f"s_cbranch_scc1 {name}_fin")
    a(f"s_cmp_eq_u32 s{sSeg2}, 1"); a(f"s_cbranch_scc1 {name}_fin")
    a(f"s_lshl_b32 s56, s{sPair}, 17"); a(f"s_lshl_b32 s57, s{sW}, 15"); a("s_add_u32 s56, s56, s57"); a(f"s_add_u32 s56, s56, {WS_OP}")
    for i in range(32):
        if i % 4 == 0 and i: a("s_add_u32 s56, s56, 4096")
        a(f"buffer_store_dwordx4 a[{aO+4*i}:{aO+4*i+3}], v{vL16}, s[4:7], s56 offen offset:{(i%4)*1024} sc1")
    a(f"v_sub_f32 v12, 0, v{NEGM}"); a(f"v_mov_b32 v13, v{vLS}")
    a(f"s_lshl_b32 s56, s{sPair}, 11"); a(f"s_lshl_b32 s57, s{sW}, 9"); a("s_add_u32 s56, s56, s57"); a(f"s_add_u32 s56, s56, {WS_ML}")
    a(f"v_lshlrev_b32 v14, 3, v{vLANE}")
    a("buffer_store_dwordx2 v[12:13], v14, s[4:7], s56 offen sc1")
    a("s_waitcnt vmcnt(49)")
    for i in range(64): a(f"v_accvgpr_mov_b32 a{aQ+i}, a{aQ2+i}")
    a(f"s_mov_b32 s{sSeg2}, 1"); a(f"s_mov_b32 s{sPub}, 1")
    a(f"s_mov_b32 s{sJs}, 0"); a(f"s_sub_u32 s{sN}, 34, s{sN}")
    a(f"s_lshl_b32 s{sLw}, s{sR}, 2"); a(f"s_add_u32 s{sLw}, s{sLw}, s{sW}")
    a("s_nop 1")
    a(f"s_branch {name}_seg")
    ool.append([f"{name}_pub:", f"s_mov_b32 s{sPub}, 0", f"s_cmp_eq_u32 s{sW}, 0", f"s_cbranch_scc0 {name}_pubret",
                f"s_lshl_b32 s56, s{sPair}, 7", f"s_add_u32 s56, s56, {WS_F}", "v_mov_b32 v12, 1", "v_mov_b32 v13, 0",
                "s_mov_b64 s[58:59], exec", "s_mov_b64 exec, 1", "buffer_store_dword v12, v13, s[4:7], s56 offen sc1", "s_mov_b64 exec, s[58:59]",
                f"s_branch {name}_pubret"])

    a.label(f"{name}_fin")
    a(f"s_mul_i32 s56, s{sH}, 229376"); a("s_add_u32 s8, s44, s56"); a("s_addc_u32 s9, s45, 0"); a(f"s_sub_u32 s10, {16*229376}, s56"); a("s_mov_b32 s11, 0x20000")
    a(f"s_mul_i32 s56, s{sH}, 100352"); a("s_add_u32 s12, s46, s56"); a("s_addc_u32 s13, s47, 0"); a(f"s_sub_u32 s14, {1792*896}, s56"); a("s_mov_b32 s15, 0x20000")
    a("s_add_u32 s76, s12, 57344"); a("s_addc_u32 s77, s13, 0"); a("s_sub_u32 s78, s14, 57344"); a("s_mov_b32 s79, 0x20000")
    a(f"s_mul_i32 s48, s{sW}, 7168")
    a(f"s_mul_i32 s57, s{sW}, 448")
    for i in range(7):
        a(f"v_add_u32 v12, s57, v{vLANE}");
        if i: a(f"v_add_u32 v12, {64*i}, v12")
        a("v_mul_u32_u24 v13, 2341, v12"); a("v_lshrrev_b32 v13, 16, v13")
        a("v_mul_u32_u24 v14, 28, v13"); a("v_sub_u32 v14, v12, v14")
        a("v_mul_u32_u24 v13, 896, v13"); a(f"v_lshl_add_u32 v{vD3+i}, v14, 4, v13")
    a(f"v_lshrrev_b32 v12, 5, v{vLANE}"); a("v_lshlrev_b32 v12, 2, v12")
    a(f"v_bfe_u32 v13, v{vLANE}, 2, 2"); a("v_add_u32 v12, v12, v13"); a("v_mul_u32_u24 v12, 448, v12")
    a(f"v_bfe_u32 v13, v{vLANE}, 4, 1"); a("v_lshl_add_u32 v12, v13, 5, v12")
    a(f"v_and_b32 v13, 3, v{vLANE}"); a(f"v_lshl_add_u32 v{vA3}, v13, 3, v12")
    a(f"v_add_u32 v{vA3+1}, 57344, v{vA3}"); a(f"v_add_u32 v{vA3+2}, {2*57344}, v{vA3}")
    a(f"s_lshl_b32 s49, s{sR}, 4"); a(f"s_add_u32 s49, s49, s{sH}"); a("s_lshl_b32 s49, s49, 2"); a(f"s_add_u32 s49, s49, s{sW}")
    a("s_mul_i32 s49, s49, 28672"); a(f"s_add_u32 s49, s49, {WS_P}")
    NS3 = 12; R3 = 5
    def dma3(sg):
        ph, sp = sg // 6, sg % 6
        srd = "s[8:11]" if sp < 4 else ("s[12:15]" if sp == 4 else "s[76:79]")
        so = (sp if sp < 4 else 0) * 57344 + ph * 448
        L = []
        for i in range(7):
            pre = [f"s_add_u32 m0, s48, {(sg % R3) * 28672 + i * 1024}"]
            if i == 0: pre.append(f"s_mov_b32 s52, {so}")
            L.append((pre, VM(("w3", sg), f"buffer_load_dwordx4 v{vD3+i}, {srd}, s52 offen lds")))
        return L
    def p3_prologue():
        L = []
        for sg in range(R3 - 1):
            for pre, ins in dma3(sg): L += pre + ["s_nop 0", ins]
        return L
    a("s_waitcnt vmcnt(0)"); a("s_barrier")
    a(f"s_cmp_eq_u32 s{sTB}, 1"); a(f"s_cbranch_scc1 {name}_own")
    a(f"s_lshl_b32 s56, s{sPair}, 7"); a(f"s_add_u32 s56, s56, {WS_F}"); a("v_mov_b32 v13, 0")
    a("s_mov_b32 s58, 0")
    a.label(f"{name}_poll")
    a("buffer_load_dword v12, v13, s[4:7], s56 offen sc1"); a("s_waitcnt vmcnt(0)")
    a("v_readfirstlane_b32 s57, v12"); a("s_add_u32 s58, s58, 1"); a(f"s_cmp_ge_u32 s58, {opt.get('bound', 1 << 22)}"); a(f"s_cbranch_scc1 {name}_pollend")
    a("s_cmp_eq_u32 s57, 1"); a(f"s_cbranch_scc0 {name}_poll")
    a.label(f"{name}_pollend")
    a(f"v_sub_f32 v{vT0}, 0, v{NEGM}")
    a(f"s_lshl_b32 s56, s{sPair}, 11"); a(f"s_lshl_b32 s57, s{sW}, 9"); a("s_add_u32 s56, s56, s57"); a(f"s_add_u32 s56, s56, {WS_ML}")
    a(f"v_lshlrev_b32 v14, 3, v{vLANE}")
    a("buffer_load_dwordx2 v[12:13], v14, s[4:7], s56 offen sc1")
    a(f"s_lshl_b32 s56, s{sPair}, 17"); a(f"s_lshl_b32 s57, s{sW}, 15"); a("s_add_u32 s56, s56, s57"); a(f"s_add_u32 s56, s56, {WS_OP}")
    for i in range(32):
        if i % 4 == 0 and i: a("s_add_u32 s56, s56, 4096")
        a(f"buffer_load_dwordx4 v[{16+4*i}:{16+4*i+3}], v{vL16}, s[4:7], s56 offen offset:{(i%4)*1024} sc1")
    pro = p3_prologue()
    for x in pro: a(x if isinstance(x, str) else x[2])
    a("s_waitcnt vmcnt(60)")
    a(f"v_max_f32 v{vT1}, v{vT0}, v12")
    a(f"v_sub_f32 v{vT0}, v{vT0}, v{vT1}"); a(f"v_sub_f32 v12, v12, v{vT1}")
    a(f"v_exp_f32 v{vT0}, v{vT0}"); a("v_exp_f32 v12, v12"); a("s_nop 0")
    a(f"v_mul_f32 v{vLS}, v{vLS}, v{vT0}"); a(f"v_fma_f32 v{vLS}, v13, v12, v{vLS}")
    a(f"v_mov_b32 v13, v{vLS}"); a("s_nop 1"); a(f"v_permlane32_swap_b32 v{vLS}, v13"); a("s_nop 1"); a(f"v_add_f32 v{vLS}, v{vLS}, v13")
    a(f"v_rcp_f32 v{vLS}, v{vLS}"); a("s_nop 0"); a(f"v_mul_f32 v{vLS}, v{vLS}, v{vG}")
    a(f"v_mul_f32 v{vT0}, v{vT0}, v{vLS}"); a(f"v_mul_f32 v12, v12, v{vLS}")
    for j0 in range(0, 64, 4):
        if j0 % 8 == 0: a(f"s_waitcnt vmcnt({28 + 32 - (j0 // 2 + 4)})")
        for k in range(4):
            j = j0 + k
            a(f"v_accvgpr_read_b32 v{144+2*k}, a{aO+2*j}"); a(f"v_accvgpr_read_b32 v{145+2*k}, a{aO+2*j+1}")
        for k in range(8): a(f"v_mul_f32 v{144+k}, v{144+k}, v{vT0}")
        for k in range(8): a(f"v_fma_f32 v{144+k}, v{16+2*j0+k}, v12, v{144+k}")
        for k in range(4): a(f"v_cvt_pk_bf16_f32 v{CT+j0+k}, v{144+2*k}, v{145+2*k}")
    a(f"s_branch {name}_p3")
    a.label(f"{name}_own")
    a.ext(pro)
    a(f"v_mov_b32 v13, v{vLS}"); a("s_nop 1"); a(f"v_permlane32_swap_b32 v{vLS}, v13"); a("s_nop 1"); a(f"v_add_f32 v{vLS}, v{vLS}, v13")
    a(f"v_rcp_f32 v{vLS}, v{vLS}"); a("s_nop 0"); a(f"v_mul_f32 v{vLS}, v{vLS}, v{vG}")
    for j0 in range(0, 64, 4):
        for k in range(4):
            j = j0 + k
            a(f"v_accvgpr_read_b32 v{144+2*k}, a{aO+2*j}"); a(f"v_accvgpr_read_b32 v{145+2*k}, a{aO+2*j+1}")
        for k in range(8): a(f"v_mul_f32 v{144+k}, v{144+k}, v{vLS}")
        for k in range(4): a(f"v_cvt_pk_bf16_f32 v{CT+j0+k}, v{144+2*k}, v{145+2*k}")
    a.label(f"{name}_p3")
    if stamp: a("s_memtime s[66:67]")
    items = []
    slot_start = {}
    for sg in range(NS3):
        ph, sp = sg // 6, sg % 6
        nk = 4 if sp < 5 else 3
        slot_start[sg] = len(items)
        for s_ in range(nk):
            B = CT + 4 * (4 * sp + s_) if sp < 4 else HF + 4 * (4 * (sp - 4) + s_)
            for t in range(7):
                items.append((sg, s_, t, B, sp == 0 and s_ == 0))
    NM = len(items)
    def rd3(g):
        sg, s_, t, B, first = items[g]
        ring = sg % R3
        base = vA3 + ring // 2
        off = (ring % 2) * 28672 + s_ * 7168 + t * 64
        b = FR + 4 * (g % 16)
        return [LDS(("f", g), f"ds_read_b64_tr_b16 v[{b}:{b+1}], v{base} offset:{off}"),
                LDS(("f", g), f"ds_read_b64_tr_b16 v[{b+2}:{b+3}], v{base} offset:{off + 3584}")]
    M = []
    for g, (sg, s_, t, B, first) in enumerate(items):
        acc = (sg // 6) * 112 + 16 * t
        M.append(MF(ar(acc, 16), fr(g), vr(B, 4), "0" if first else ar(acc, 16)))
    fill = {}
    D = 8
    for g in range(0, NM, 4):
        put(fill, g - 1, WLDS(("f", min(g + 3, NM - 1))))
    for sg in range(NS3 - 1):
        g0 = slot_start[sg + 1] - D
        put(fill, g0 - 1, WVM(("w3", sg + 1)), "s_barrier")
        if sg + R3 - 1 < NS3:
            for i, (pre, ins) in enumerate(dma3(sg + R3 - 1)):
                put(fill, g0 + 3 * i, *pre); put(fill, g0 + 3 * i + 1, ins)
    for g in range(NM - D): put(fill, g, *rd3(g + D))
    def epi3(ph):
        L = []
        for t in range(7):
            acc = ph * 112 + 16 * t
            tb = 200 + (t % 2) * 16
            for f in range(2):
                for i in range(8): L.append(f"v_accvgpr_read_b32 v{tb+8*f+i}, a{acc+8*f+i}")
                for i in range(4): L.append(f"v_cvt_pk_bf16_f32 v{tb+8*f+i}, v{tb+8*f+2*i}, v{tb+8*f+2*i+1}")
                n = (ph * 7 + t) * 2 + f
                if n % 4 == 0 or (t == 0 and f == 0): L.append(f"s_add_u32 s53, s49, {(n // 4) * 4096}")
                L.append(VM("pst", f"buffer_store_dwordx4 v[{tb+8*f}:{tb+8*f+3}], v{vL16}, s[4:7], s53 offen offset:{(n%4)*1024}"))
        return L
    spread(fill, NM // 2 + 3, NM - 4, epi3(0))
    def order3(fill):
        r = {}
        for k, l in fill.items():
            w = [x for x in l if not isinstance(x, str) and x[0] == "wlds"]
            bar = [x for x in l if (not isinstance(x, str) and x[0] == "wvm") or x == "s_barrier"]
            o = [x for x in l if x not in w and x not in bar]
            r[k] = o + bar + w
        return r
    a.put(WVM(("w3", 0))); a("s_barrier")
    for g in range(D): a.ext(rd3(g))
    a.ext(interleave(M, order3(fill)))
    a("s_nop 7"); a("s_nop 3")
    if stamp: a("s_memtime s[68:69]")
    a.ext(epi3(1))
    if stamp:
        a("s_waitcnt vmcnt(0)")
        a("s_memtime s[70:71]"); a("s_memrealtime s[72:73]"); a("s_waitcnt lgkmcnt(0)")
        a(f"s_cmp_eq_u32 s{sW}, 0"); a(f"s_cbranch_scc0 {name}_done")
        a("s_sub_u32 s64, s64, s60"); a("s_sub_u32 s66, s66, s60"); a("s_sub_u32 s68, s68, s60"); a("s_sub_u32 s70, s70, s60"); a("s_sub_u32 s72, s72, s62")
        a("v_mov_b32 v96, s64"); a("v_mov_b32 v97, s66"); a("v_mov_b32 v98, s68"); a("v_mov_b32 v99, s70")
        a("v_mov_b32 v100, s62"); a("v_mov_b32 v101, s63"); a("v_mov_b32 v102, s72"); a(f"v_mov_b32 v103, s{sR}"); a("s_sub_u32 s80, s80, s60"); a("s_sub_u32 s82, s82, s60"); a("v_mov_b32 v106, s80"); a("v_mov_b32 v107, s82")
        a("s_lshl_b32 s53, s2, 6"); a(f"s_add_u32 s53, s53, {(128 << 20) + 8192}")
        a("v_mov_b32 v104, 0"); a("s_mov_b64 exec, 1")
        a("buffer_store_dwordx4 v[96:99], v104, s[4:7], s53 offen"); a("buffer_store_dwordx4 v[100:103], v104, s[4:7], s53 offen offset:16"); a("buffer_store_dwordx2 v[106:107], v104, s[4:7], s53 offen offset:32")
        a("s_waitcnt vmcnt(0)")
    a.label(f"{name}_done")
    a("s_endpgm")
    for blk in ool: a.ext(blk)
    a(kernel_desc(name, 512, 256))
    return a.text()

def gen_k3(name="k3_kernel", opt=None):
    a = TAsm()
    a(kernel_header(name))
    a("s_cmp_ge_u32 s2, 224"); a(f"s_cbranch_scc1 {name}_done")
    stamp = (opt or {}).get("stamp")
    if stamp: a("s_memrealtime s[62:63]")
    a("s_load_dwordx2 s[42:43], s[0:1], 96"); a("s_load_dwordx2 s[44:45], s[0:1], 80")
    a("v_lshrrev_b32 v2, 6, v0"); a("v_and_b32 v1, 63, v0"); a("s_nop 0"); a("v_readfirstlane_b32 s16, v2")
    a("v_lshlrev_b32 v2, 4, v1")
    a("s_lshl_b32 s17, s2, 2"); a("s_add_u32 s17, s17, s16")
    a("s_mul_i32 s18, s17, 4682"); a("s_lshr_b32 s18, s18, 16")
    a("s_mul_i32 s19, s18, 14"); a("s_sub_u32 s19, s17, s19")
    a("s_lshr_b32 s20, s18, 2"); a("s_and_b32 s21, s18, 3")
    a("s_lshl_b32 s22, s20, 6"); a("s_add_u32 s22, s22, s21"); a("s_mul_i32 s22, s22, 28672"); a("s_lshl_b32 s23, s19, 11"); a("s_add_u32 s22, s22, s23")
    a(f"s_add_u32 s22, s22, {WS_P}")
    a("s_waitcnt lgkmcnt(0)")
    a("s_mov_b32 s4, s42"); a("s_mov_b32 s5, s43"); a("s_mov_b32 s6, 0x10000000"); a("s_mov_b32 s7, 0x20000")
    a("s_mov_b32 s8, s44"); a("s_mov_b32 s9, s45"); a(f"s_mov_b32 s10, {2048*896}"); a("s_mov_b32 s11, 0x20000")
    for h in range(16):
        for f in range(2):
            a.put(VM(("p", h), f"buffer_load_dwordx4 v[{16+8*h+4*f}:{16+8*h+4*f+3}], v2, s[4:7], s22 offen offset:{f*1024}"))
        if h < 15: a(f"s_add_u32 s22, s22, {4*28672}")
    a("v_and_b32 v3, 31, v1"); a("v_mul_u32_u24 v3, 896, v3"); a("v_lshrrev_b32 v4, 5, v1"); a("v_lshl_add_u32 v3, v4, 4, v3")
    a("s_mul_i32 s23, s18, 28672"); a("s_lshl_b32 s24, s19, 6"); a("s_add_u32 s23, s23, s24")
    for h in range(16):
        a.put(WVM(("p", h)))
        for i in range(8):
            src = 16 + 8 * h + i
            if h == 0:
                a(f"v_lshlrev_b32 v{160+2*i}, 16, v{src}"); a(f"v_and_b32 v{161+2*i}, 0xffff0000, v{src}")
            else:
                a(f"v_lshlrev_b32 v4, 16, v{src}"); a(f"v_and_b32 v5, 0xffff0000, v{src}")
                a(f"v_add_f32 v{160+2*i}, v{160+2*i}, v4"); a(f"v_add_f32 v{161+2*i}, v{161+2*i}, v5")
    for i in range(8): a(f"v_cvt_pk_bf16_f32 v{8+i}, v{160+2*i}, v{161+2*i}")
    a("s_nop 1")
    for f in range(2):
        b = 8 + 4 * f
        a(f"v_permlane32_swap_b32 v{b}, v{b+2}"); a(f"v_permlane32_swap_b32 v{b+1}, v{b+3}")
    a("s_nop 1")
    for f in range(2):
        b = 8 + 4 * f
        a(f"buffer_store_dwordx4 v[{b}:{b+3}], v3, s[8:11], s23 offen offset:{f*32}")
    if stamp:
        a("s_waitcnt vmcnt(0)"); a("s_memrealtime s[64:65]"); a("s_waitcnt lgkmcnt(0)")
        a("v_mov_b32 v96, s62"); a("v_mov_b32 v97, s64"); a("v_mov_b32 v104, 0")
        a("s_lshl_b32 s53, s17, 3"); a(f"s_add_u32 s53, s53, {(128 << 20) + 65536}")
        a("s_mov_b64 exec, 1"); a("buffer_store_dwordx2 v[96:97], v104, s[4:7], s53 offen"); a("s_waitcnt vmcnt(0)")
    a.label(f"{name}_done")
    a("s_endpgm")
    a(kernel_desc(name, 192, 192))
    return a.text()

K2_LAUNCH = f"; @launch kernel=k2_kernel grid=(256,1,1) block=(256,1,1) lds={LDS2}"
K3_LAUNCH = "; @launch kernel=k3_kernel grid=(224,1,1) block=(256,1,1) lds=0"
```
